```python
import torch

def _softmax(x, axis=-1):
    return torch.softmax(x, dim=axis)
def _gelu(x):
    return torch.nn.functional.gelu(x, approximate="tanh")
def _silu(x):
    return torch.nn.functional.silu(x)
def _sigmoid(x):
    return torch.sigmoid(x)
def _layernorm(x, axis=-1, eps=1e-5):
    m = x.mean(dim=axis, keepdim=True)
    v = x.var(dim=axis, keepdim=True, unbiased=False)
    return (x - m) / torch.sqrt(v + eps)
def _scatter_add(tgt, idx, src, axis=0):
    return tgt.clone().index_add_(axis, idx, src)
def _segment_sum(src, seg, n):
    out = torch.zeros((n,) + src.shape[1:], dtype=src.dtype)
    return out.index_add_(0, seg, src)
def _pad(x, pw):
    flat = tuple(v for pair in reversed(pw) for v in pair)
    return torch.nn.functional.pad(x, flat)

kernel_name = 'standalone__sequential_behavior_din__recsys'

def setup_inputs():

    _w = (lambda a: (lambda t: t.to(torch.bfloat16) if t.is_floating_point() else t)(torch.as_tensor(a)))
    B, L, D = 16384, 50, 16
    H = D
    return {
        "target": _w((lambda *s: torch.randn(*s, dtype=torch.bfloat16) * 1.6)(B, D)),
        "hist": _w((lambda *s: torch.randn(*s, dtype=torch.bfloat16) * 1.6)(B, L, D)),
        "mask": _w((lambda lo, hi, *s: torch.randint(lo, hi, s))(0, 2, B, L).to(float)),
        "w1": _w((lambda *s: torch.randn(*s, dtype=torch.bfloat16) * 1.6)(4 * D, H) * (4 * D) ** -0.5),
        "b1": _w((lambda *s: torch.randn(*s, dtype=torch.bfloat16) * 1.6)(H) * 0.1),
        "w2": _w((lambda *s: torch.randn(*s, dtype=torch.bfloat16) * 0.05)(H, 1) * H ** -0.5),
        "b2": _w((lambda *s: torch.randn(*s, dtype=torch.bfloat16) * 0.05)(1) * 0.1),
    }

def reference(target, hist, mask, w1, b1, w2, b2):
    L = hist.shape[1]
    tgt = (lambda x, n, axis: torch.repeat_interleave(x, n, dim=axis))(target[:, None, :], L, axis=1)
    feat = torch.concatenate([hist, tgt, hist - tgt, hist * tgt], axis=-1)
    h = _sigmoid(feat @ w1 + b1)
    scores = (h @ w2 + b2)[..., 0] * mask
    return torch.einsum('bl,bld->bd', scores, hist)
```

```python
import re

class Asm:
    def __init__(self):
        self.lines = []
        self.pos = 0
        self.last_write = {}
        self.last_mfma_cread = {}
        self.sgpr_valu_write = {}
        self.m0_write = -100
        self.lds_q = []
        self.vm_q = []
        self.nops = 0
        self.stat = {}

    def raw(self, text):
        self.lines.append(text)

    def comment(self, text):
        self.lines.append("    ; " + text)

    def _emit(self, text, n=1):
        self.lines.append("    " + text)
        self.pos += n

    def nop(self, n):
        while n > 0:
            k = min(n, 16)
            self._emit(f"s_nop {k-1}", k)
            self.nops += k
            n -= k

    def _need(self, at_least_pos):
        if self.pos < at_least_pos:
            self.nop(at_least_pos - self.pos)

    def wait_lds_for(self, regs):
        regs = set(regs)
        idx = -1
        for i, d in enumerate(self.lds_q):
            if d & regs:
                idx = i
        if idx >= 0:
            n = len(self.lds_q) - 1 - idx
            self._emit(f"s_waitcnt lgkmcnt({min(n,15)})")
            self.lds_q = self.lds_q[idx + 1:] if n <= 15 else self.lds_q[len(self.lds_q)-15:]

    def wait_lds_all(self):
        self._emit("s_waitcnt lgkmcnt(0)")
        self.lds_q = []

    def wait_vm_for(self, regs=(), tag=None):
        regs = set(regs)
        idx = -1
        for i, (t, d) in enumerate(self.vm_q):
            if (d & regs) or (tag is not None and t == tag):
                idx = i
        if idx >= 0:
            n = len(self.vm_q) - 1 - idx
            self._emit(f"s_waitcnt vmcnt({n})")
            self.vm_q = self.vm_q[idx + 1:]

    def ins(self, kind, text, rd=(), wr=(), srd=(), swr=(), cread=(), tag=None, ctuple=None):
        rd = list(rd); wr = list(wr)
        self.wait_lds_for(rd + wr)
        self.wait_vm_for(rd + wr)
        need = self.pos
        isvalu = kind in ("valu", "trans", "dot")
        for r in rd:
            w = self.last_write.get(r)
            if not w: continue
            p, k, tup, op = w
            if k in ("valu", "trans", "dot") and kind == "mfma":
                need = max(need, p + 1 + 2)
            if k == "trans" and kind in ("valu", "dot"):
                need = max(need, p + 1 + 1)
            if k == "dot" and not (kind == "dot"):
                need = max(need, p + 1 + 3)
            if k == "dot" and kind == "dot":
                need = max(need, p + 1 + 3)
            if k == "mfma":
                if kind == "mfma":
                    if r in cread and ctuple == tup:
                        pass
                    elif r in cread:
                        need = max(need, p + 1 + 6)
                    else:
                        need = max(need, p + 1 + 8)
                else:
                    need = max(need, p + 1 + 8)
            if k in ("valu", "trans", "dot") and kind == "rfl":
                need = max(need, p + 1 + 1)
        for r in wr:
            w = self.last_write.get(r)
            if w:
                p, k, tup, op = w
                if k == "mfma" and not (kind == "mfma" and ctuple == tup and r in cread):
                    need = max(need, p + 1 + 8)
                if k == "dot" and kind != "dot":
                    need = max(need, p + 1 + 3)
            c = self.last_mfma_cread.get(r)
            if c is not None and kind != "mfma":
                need = max(need, c + 1 + 3)
        for s in srd:
            p = self.sgpr_valu_write.get(s)
            if p is not None:
                if kind in ("vmem", "vmemst", "dma"):
                    need = max(need, p + 1 + 5)
                elif isvalu:
                    need = max(need, p + 1 + 2)
        if kind == "dma":
            need = max(need, self.m0_write + 1 + 1)
        self._need(need)
        p = self.pos
        self._emit(text)
        self.stat[kind] = self.stat.get(kind, 0) + 1
        for r in wr:
            if kind in ("valu", "trans", "dot", "mfma"):
                self.last_write[r] = (p, kind, tuple(wr), text.split()[0])
            else:
                self.last_write.pop(r, None)
        for r in cread:
            self.last_mfma_cread[r] = p
        for s in swr:
            if kind in ("valu", "rfl"):
                self.sgpr_valu_write[s] = p
            else:
                self.sgpr_valu_write.pop(s, None)
            if s == "m0":
                self.m0_write = p
        if kind == "ds":
            self.lds_q.append(set(wr))
        elif kind == "dsw":
            self.lds_q.append(set())
        elif kind in ("vmem", "dma", "vmemst"):
            self.vm_q.append((tag, set(wr)))

    @staticmethod
    def vr(a, n=1):
        return f"v{a}" if n == 1 else f"v[{a}:{a+n-1}]"

    def valu(self, op, dst, *srcs, kind="valu", nd=1, ns=1):
        rd = []; txt = []
        for s in srcs:
            if isinstance(s, int):
                rd += list(range(s, s + ns)); txt.append(self.vr(s, ns))
            else:
                txt.append(s)
        srd = [t for t in txt if re.match(r"^s\d+$", t)]
        for t in txt:
            m = re.match(r"^s\[(\d+):(\d+)\]$", t)
            if m: srd += [f"s{i}" for i in range(int(m.group(1)), int(m.group(2)) + 1)]
        self.ins(kind, f"{op} {self.vr(dst, nd)}, " + ", ".join(txt), rd=rd, wr=range(dst, dst + nd), srd=srd)

    def salu(self, text, swr=()):
        self.ins("salu", text, swr=swr)

    def mfma(self, d, a, b, c):
        rd = list(range(a, a + 4)) + list(range(b, b + 4))
        cr = []
        if isinstance(c, int):
            cr = list(range(c, c + 4)); rd += cr; ct = self.vr(c, 4)
        else:
            ct = c
        self.ins("mfma", f"v_mfma_f32_16x16x32_bf16 {self.vr(d,4)}, {self.vr(a,4)}, {self.vr(b,4)}, {ct}",
                 rd=rd, wr=range(d, d + 4), cread=cr, ctuple=tuple(cr))

    def ds_read(self, op, dst, n, addr, off=0):
        self.ins("ds", f"{op} {self.vr(dst, n)}, v{addr}" + (f" offset:{off}" if off else ""), rd=[addr], wr=range(dst, dst + n))

    def ds_write(self, op, addr, src, n, off=0):
        self.ins("dsw", f"{op} v{addr}, {self.vr(src, n)}" + (f" offset:{off}" if off else ""), rd=[addr] + list(range(src, src + n)))

    def text(self):
        return "\n".join(self.lines) + "\n"
```

```python
import sys, struct
from asmlib import Asm

HILO = int(sys.argv[1]) if len(sys.argv) > 1 else 1
TS = int(sys.argv[2]) if len(sys.argv) > 2 else 0

NAME = "standalone__sequential_behavior_din__recsys_kernel"
NWG = 1024
S_HEX = "0xbfb8aa3b"
IMG_ACS, IMG_WDS, IMG_AP, IMG_B1 = 0, 1024, 2048, 3072
WAVE0 = 3200
H_OFF, R_OFF, TF_OFF, TR_OFF, WSZ = 0, 6656, 6656 + 1792, 6656 + 1792 + 256, 8832
RP = 448
LDS = WAVE0 + 4 * WSZ

a = Asm()
hdr = open("standalone__sequential_behavior_din__recsys.s.ref").read().split("; Override")[0]
a.raw(hdr.rstrip())
a.raw(f"; @launch grid=({NWG},1,1) block=(256,1,1) lds={LDS}")
a.raw('.amdgcn_target "amdgcn-amd-amdhsa--gfx950"')
a.raw(".text")
a.raw(f".globl {NAME}")
a.raw(".p2align 8")
a.raw(f".type {NAME},@function")
a.raw(f"{NAME}:")

nv = [1]
def V(n=1, al=None):
    al = al or (2 if n > 1 else 1)
    while nv[0] % al: nv[0] += 1
    r = nv[0]; nv[0] += n
    return r
vLane = V(); vA1 = V(); vA3 = V(); vAB3 = V(); vAW = V(); vOut = V()
vM = V(4)
A2a = V(4); A2b = V(4); C2 = V(4)
Aj = [V(4) for _ in range(4)]
Cj = [V(4) for _ in range(4)]
D3 = V(4)
base_tmp = nv[0]
vT32 = V(); vT16 = V(); selLo = V(); selHi = V()
ACS = V(8); WDS = V(8); AP = V(4); B1S = V(4)
base2 = nv[0]
wa = V(); wb = V(); wc = V(); wd = V(); b1v = V(); tv = V(); w2p = V(2)
vL2 = V(); vT2 = V(); vN = V(); vG = V(); t0 = V(); t1 = V(); t2 = V(); t3 = V()
vPA = V(); vPP = V()
Z4 = V(4)
maxP = nv[0]
vL16 = V(); vACS = V(); vB1S = V()
maxP2 = nv[0]
nv[0] = base2
T = [V(8) for _ in range(2)]; TR = [V(4) for _ in range(2)]
assert nv[0] >= maxP
if nv[0] < maxP2: nv[0] = maxP2
X = V(8); H = V(4)
maxD = nv[0]
nv[0] = base_tmp
B1 = [[V(4), V(4)] for _ in range(2)]
D1 = [[V(4), V(4)] for _ in range(2)]
D1x = V(4)
Sg = [V(4) for _ in range(2)]
D2 = V(4)
A3 = [V(4) for _ in range(2)]
B3 = [V(4) for _ in range(2)]
sc = V(); o01 = V(2)
maxE = nv[0]
NVGPR = max(maxD, maxE)

a.salu(f"s_cmp_ge_u32 s2, {NWG}")
a.salu("s_cbranch_scc1 L_done")
if TS:
    a.salu("s_memrealtime s[60:61]")
    a.salu("s_load_dwordx2 s[64:65], s[0:1], 72")
a.salu("s_load_dwordx16 s[4:19], s[0:1], 0")
a.valu("v_lshrrev_b32", t0, "6", 0)
a.valu("v_and_b32", vLane, "63", 0)
a.ins("rfl", f"v_readfirstlane_b32 s3, v{t0}", rd=[t0], swr=["s3"])
for r in (wa, wb, wc, wd, b1v, tv, C2, vM, vM + 1, vM + 2, vM + 3, Z4, Z4 + 1, Z4 + 2, Z4 + 3):
    a.valu("v_mov_b32", r, "0")
a.valu("v_lshlrev_b32", vT2, "1", 0)
a.valu("v_lshlrev_b32", vL2, "1", vLane)
a.valu("v_lshlrev_b32", vL16, "4", vLane)
a.valu("v_and_b32", vN, "15", vLane)
a.valu("v_lshrrev_b32", vG, "4", vLane)
a.valu("v_lshlrev_b32", t1, "1", vN)
a.valu("v_lshlrev_b32", t2, "3", vG)
a.salu("s_lshl_b32 s32, s2, 2")
a.salu("s_add_u32 s32, s32, s3")
a.salu("s_mul_i32 s33, s32, 6400")
a.salu("s_mul_i32 s34, s32, 400")
a.salu("s_lshl_b32 s35, s32, 7")
a.salu(f"s_mul_i32 s36, s3, {WSZ}")
a.salu(f"s_add_u32 s36, s36, {WAVE0}")
a.salu(f"s_mov_b32 s37, {S_HEX}")
a.salu("s_add_u32 s38, s33, 4096")
a.salu("s_mov_b32 s22, %d" % (16384 * 1600))
a.salu("s_mov_b32 s23, 0x20000")
a.salu("s_mov_b32 s26, %d" % (16384 * 100))
a.salu("s_mov_b32 s27, 0x20000")
a.salu("s_mov_b32 s30, %d" % (16384 * 32))
a.salu("s_mov_b32 s31, 0x20000")
a.salu("s_mov_b32 s46, %d" % (16384 * 32))
a.salu("s_mov_b32 s47, 0x20000")
a.salu("s_mov_b32 m0, s36", swr=["m0"])
a._emit("s_waitcnt lgkmcnt(0)")
for i, r in enumerate((wa, wb, wc, wd)):
    a.ins("vmem", f"global_load_short_d16_hi v{r}, v{vT2}, s[10:11]" + (f" offset:{512*i}" if i else ""), rd=[vT2, r], wr=[r])
a.ins("vmem", f"global_load_short_d16_hi v{b1v}, v{t1}, s[12:13]", rd=[t1, b1v], wr=[b1v])
a.ins("vmem", f"global_load_dwordx2 v[{w2p}:{w2p+1}], v{t2}, s[14:15]", rd=[t2], wr=[w2p, w2p + 1])
a.ins("vmem", f"global_load_short_d16_hi v{C2}, v{Z4}, s[16:17]", rd=[Z4, C2], wr=[C2])
a.salu("s_mov_b32 s44, s4")
a.salu("s_and_b32 s45, s5, 0xffff")
a.salu("s_mov_b32 s24, s8")
a.salu("s_and_b32 s25, s9, 0xffff")
a.salu("s_mov_b32 s20, s6")
a.salu("s_and_b32 s21, s7, 0xffff")
a.ins("vmem", f"buffer_load_short_d16_hi v{tv}, v{vL2}, s[44:47], s35 offen", rd=[vL2, tv], wr=[tv])
for G in range(4):
    a.ins("vmem", f"buffer_load_short_d16_hi v{vM+G}, v{vL2}, s[24:27], s34 offen" + (f" offset:{128*G}" if G else ""), rd=[vL2, vM + G], wr=[vM + G])
for k in range(7):
    if k == 4:
        a.salu("s_add_u32 m0, s36, 4096", swr=["m0"])
    if k == 6:
        a.salu("s_mov_b32 exec_hi, 0")
    so = "s33" if k < 4 else "s38"
    off = (k % 4) * 1024
    a.ins("dma", f"buffer_load_dwordx4 v{vL16}, s[20:23], {so} offen" + (f" offset:{off}" if off else "") + " lds", rd=[vL16], tag=f"h{k}")
a.salu("s_mov_b32 exec_hi, -1")
a.salu("s_mov_b32 s28, s18")
a.salu("s_and_b32 s29, s19, 0xffff")
a.valu("v_and_b32", t0, "1", vG)
a.valu("v_lshlrev_b32", t3, "5", vN)
a.valu("v_lshl_add_u32", vA1, t0, "4", t3)
a.valu("v_add_u32", vA1, "s36", vA1)
a.valu("v_lshl_add_u32", vOut, vG, "3", t3)
a.valu("v_lshl_add_u32", vA3, vLane, "3", "s36")
a.valu("v_lshl_add_u32", vT32, t0, "5", "s36")
a.valu("v_lshl_add_u32", vT16, t0, "4", "s36")
a.valu("v_lshlrev_b32", vACS, "6", vN)
a.valu("v_lshl_add_u32", vACS, t0, "5", vACS)
a.valu("v_lshlrev_b32", vB1S, "4", vG)
a.valu("v_and_b32", t3, "3", vN)
a.valu("v_mul_u32_u24", t3, str(RP), t3)
a.valu("v_add3_u32", vAB3, t3, vB1S, "s36")
a.valu("v_lshrrev_b32", t3, "5", vLane)
a.valu("v_lshl_add_u32", vAW, t3, "6", "s36")
a.valu("v_bfe_u32", t3, vLane, "2", "2")
a.valu("v_lshl_add_u32", vAW, t3, "4", vAW)
a.valu("v_lshl_add_u32", vAW, t0, "3", vAW)
a.valu("v_and_b32", t3, "3", vLane)
a.valu("v_lshl_add_u32", vAW, t3, "1", vAW)
a.valu("v_add_u32", t3, "s36", vL16)
a.ds_write("ds_write_b128", t3, Z4, 4, R_OFF)
a.ds_write("ds_write_b128", t3, Z4, 4, R_OFF + 1024)
a.valu("v_lshrrev_b32", t3, "4", 0)
a.valu("v_lshlrev_b32", vPA, "6", vN)
a.valu("v_lshl_add_u32", vPA, t3, "2", vPA)
a.valu("v_lshrrev_b32", t1, "3", t3)
a.valu("v_lshlrev_b32", vPP, "8", t1)
a.valu("v_lshl_add_u32", vPP, vN, "4", vPP)
a.valu("v_and_b32", t3, "7", t3)
a.valu("v_lshl_add_u32", vPP, t3, "1", vPP)
a.salu("s_mov_b32 s40, 0")
a.salu("s_mov_b32 s41, -1")
a.valu("v_mov_b32", t1, "0xbf80")
a.valu("v_mov_b32", t2, "0xbf800000")
a.valu("v_cndmask_b32", selLo, "0", t1, "s[40:41]")
a.valu("v_cndmask_b32", selHi, "0", t2, "s[40:41]")
a.valu("v_add_f32", wa, wa, wc)
a.valu("v_sub_f32", wb, wb, wc)
a.valu("v_mul_f32", wa, "s37", wa)
a.valu("v_mul_f32", wd, "s37", wd)
a.valu("v_mul_f32", wb, "s37", wb)
a.ds_write("ds_write_b32", vPA, wa, 1, IMG_ACS)
a.ds_write("ds_write_b32", vPA, wd, 1, IMG_WDS)
a.valu("v_cvt_pk_bf16_f32", t1, wb, wb)
a.valu("v_lshlrev_b32", t2, "16", t1)
a.valu("v_sub_f32", t2, wb, t2)
a.valu("v_cvt_pk_bf16_f32", t2, t2, t2)
a.ds_write("ds_write_b16", vPP, t1, 1, IMG_AP)
a.ds_write("ds_write_b16", vPP, t2, 1, IMG_AP + 512)
a.valu("v_mul_f32", b1v, "s37", b1v)
a.valu("v_lshlrev_b32", t3, "2", vN)
a.ds_write("ds_write_b32", t3, b1v, 1, IMG_B1)
for i, (dst, row) in enumerate(((A2a, 0), (A2a + 2, 4), (A2b, 8), (A2b + 2, 12))):
    m = (1 << row) | (1 << (row + 16))
    a.salu(f"s_mov_b32 s{48+2*i}, {m:#x}")
    a.salu(f"s_mov_b32 s{49+2*i}, {m:#x}")
for i, (dst, row) in enumerate(((A2a, 0), (A2a + 2, 4), (A2b, 8), (A2b + 2, 12))):
    a.valu("v_cndmask_b32", dst, "0", w2p, f"s[{48+2*i}:{49+2*i}]")
    a.valu("v_cndmask_b32", dst + 1, "0", w2p + 1, f"s[{48+2*i}:{49+2*i}]")
a.valu("v_lshl_add_u32", t3, vLane, "2", "s36")
a.valu("v_add_u32", t1, "s36", vL2)
a.ds_write("ds_write_b32", t3, tv, 1, TF_OFF)
a.ds_write("ds_write_b16_d16_hi", t1, tv, 1, TR_OFF)
a.wait_lds_all()
a._emit("s_barrier")
a.ds_read("ds_read_b128", ACS, 4, vACS, IMG_ACS)
a.ds_read("ds_read_b128", ACS + 4, 4, vACS, IMG_ACS + 16)
a.ds_read("ds_read_b128", WDS, 4, vACS, IMG_WDS)
a.ds_read("ds_read_b128", WDS + 4, 4, vACS, IMG_WDS + 16)
a.ds_read("ds_read_b128", AP, 4, vL16, IMG_AP)
a.ds_read("ds_read_b128", B1S, 4, vB1S, IMG_B1)
def dread(j):
    a.ds_read("ds_read_b128", T[j % 2], 4, vT32, TF_OFF + 64 * j)
    a.ds_read("ds_read_b128", T[j % 2] + 4, 4, vT32, TF_OFF + 64 * j + 16)
    a.ds_read("ds_read_b128", TR[j % 2], 4, vT16, TR_OFF + 32 * j)
dread(0); dread(1)
for j in range(4):
    Tj = T[j % 2]
    for k in range(4):
        a.valu("v_pk_fma_f32", X + 2 * k, Tj + 2 * k, WDS + 2 * k, ACS + 2 * k, nd=2, ns=2)
    a.mfma(Cj[j], AP, TR[j % 2], B1S)
    if j + 2 < 4: dread(j + 2)
    if HILO:
        for k in range(4):
            a.valu("v_cvt_pk_bf16_f32", H + k, X + 2 * k, X + 2 * k + 1)
        for k in range(4):
            a.valu("v_dot2_f32_bf16", X + 2 * k, H + k, selLo, X + 2 * k, kind="dot")
            a.valu("v_dot2_f32_bf16", X + 2 * k + 1, H + k, selHi, X + 2 * k + 1, kind="dot")
        for k in range(4):
            a.valu("v_cvt_pk_bf16_f32", Aj[j] + k, X + 2 * k, X + 2 * k + 1)
    else:
        for k in range(4):
            a.valu("v_cvt_pk_bf16_f32", H + k, X + 2 * k, X + 2 * k + 1)
        for k in range(4):
            a.valu("v_cndmask_b32", Aj[j] + k, H + k, "0", "s[40:41]")

NT = 13
def tile_info(q):
    i0 = 16 * q
    ja = min(i0 // 50, 3); jb = min((i0 + 15) // 50, 3)
    n0 = 50 * jb - i0 if jb != ja else None
    return ja, jb, n0
smask = {}
sreg = 48
for q in range(NT):
    ja, jb, n0 = tile_info(q)
    if n0 is not None:
        pat = (0xFFFF << n0) & 0xFFFF; pat |= pat << 16
        a.salu(f"s_mov_b32 s{sreg}, {pat:#x}")
        a.salu(f"s_mov_b32 s{sreg+1}, {pat:#x}")
        smask[q] = f"s[{sreg}:{sreg+1}]"; sreg += 2

NP = 7
def tiles(P): return [q for q in (2 * P, 2 * P + 1) if q < NT]
def L(P):
    a.wait_vm_for(tag=f"h{P}")
    for i, q in enumerate(tiles(P)):
        a.ds_read("ds_read_b128", B1[P % 2][i], 4, vA1, H_OFF + 512 * q)
def M(P):
    for i, q in enumerate(tiles(P)):
        ja, jb, n0 = tile_info(q)
        a.mfma(D1[P % 2][i], Aj[ja], B1[P % 2][i], Cj[ja])
        if n0 is not None:
            a.mfma(D1x, Aj[jb], B1[P % 2][i], Cj[jb])
def Sel(P):
    for i, q in enumerate(tiles(P)):
        ja, jb, n0 = tile_info(q)
        if n0 is not None:
            for r in range(4):
                a.valu("v_cndmask_b32", D1[P % 2][i] + r, D1[P % 2][i] + r, D1x + r, smask[q])
def Sg_(P):
    ts = tiles(P)
    regs = [D1[P % 2][i] + r for i in range(len(ts)) for r in range(4)]
    for r in regs: a.valu("v_exp_f32", r, r, kind="trans")
    for r in regs: a.valu("v_add_f32", r, "1.0", r)
    for r in regs: a.valu("v_rcp_f32", r, r, kind="trans")
    for i in range(len(ts)):
        d = D1[P % 2][i]
        a.valu("v_cvt_pk_bf16_f32", Sg[P % 2] + 2 * i, d, d + 1)
        a.valu("v_cvt_pk_bf16_f32", Sg[P % 2] + 2 * i + 1, d + 2, d + 3)
def W(P):
    if P % 2 == 0: a.mfma(D2, A2a, Sg[0], C2)
    else: a.mfma(D2, A2b, Sg[1], D2)
RW = {0: [(0, 50, 0), (50, 64, 1)], 1: [(0, 36, 1), (36, 64, 2)], 2: [(0, 22, 2), (22, 64, 3)], 3: [(0, 8, 3)]}
def Xs(G):
    a.valu("v_mul_f32", sc, D2, vM + G)
    a.valu("v_cvt_pk_bf16_f32", sc, sc, sc)
    for lo, hi, j in RW[G]:
        m = ((1 << hi) - 1) & ~((1 << lo) - 1)
        a.salu(f"s_mov_b32 exec_lo, {m & 0xffffffff:#x}")
        a.salu(f"s_mov_b32 exec_hi, {m >> 32:#x}")
        a.ds_write("ds_write_b16", vAW, sc, 1, R_OFF + j * RP + G * 128)
    a.salu("s_mov_b64 exec, -1")
    for i, c in enumerate((2 * G, 2 * G + 1)):
        if c > 6: continue
        a.ds_read("ds_read_b64_tr_b16", A3[i], 2, vA3, H_OFF + c * 1024)
        a.ds_read("ds_read_b64_tr_b16", A3[i] + 2, 2, vA3, H_OFF + c * 1024 + 512)
        a.ds_read("ds_read_b128", B3[i], 4, vAB3, R_OFF + c * 64)
def Y(G):
    for i, c in enumerate((2 * G, 2 * G + 1)):
        if c > 6: continue
        a.mfma(D3, A3[i], B3[i], "0" if c == 0 else D3)

L(0); L(1)
M(0)
for P in range(NP):
    Sel(P)
    if P + 1 < NP: M(P + 1)
    if P >= 2 and P % 2 == 0: Xs((P - 2) // 2)
    if P + 2 < NP: L(P + 2)
    Sg_(P)
    if P >= 2 and P % 2 == 0: Y((P - 2) // 2)
    W(P)
Xs(3)
Y(3)
a.valu("v_cvt_pk_bf16_f32", o01, D3, D3 + 1)
a.valu("v_cvt_pk_bf16_f32", o01 + 1, D3 + 2, D3 + 3)
a.salu("s_mov_b32 exec_lo, 0x000f000f")
a.salu("s_mov_b32 exec_hi, 0x000f000f")
a.ins("vmemst", f"buffer_store_dwordx2 v[{o01}:{o01+1}], v{vOut}, s[28:31], s35 offen", rd=[o01, o01 + 1, vOut])
if TS:
    a.raw("""    s_waitcnt vmcnt(0)
    s_memrealtime s[62:63]
    s_lshl_b32 s66, s32, 4
    v_mov_b32 v1, s66
    s_waitcnt lgkmcnt(0)
    v_mov_b32 v4, s60
    v_mov_b32 v5, s61
    v_mov_b32 v6, s62
    v_mov_b32 v7, s63
    s_mov_b64 exec, 1
    global_store_dwordx4 v1, v[4:7], s[64:65]""")
a.raw("L_done:")
a.raw("    s_endpgm")
acc = (NVGPR + 3) // 4 * 4
a.raw(f""".section .rodata,"a"
.p2align 6
.amdhsa_kernel {NAME}
  .amdhsa_next_free_vgpr {NVGPR}
  .amdhsa_next_free_sgpr 72
  .amdhsa_accum_offset {acc}
  .amdhsa_group_segment_fixed_size 0
  .amdhsa_kernarg_size 80
  .amdhsa_user_sgpr_count 2
  .amdhsa_user_sgpr_kernarg_segment_ptr 1
  .amdhsa_system_sgpr_workgroup_id_x 1
.end_amdhsa_kernel""")
sys.stdout.write(a.text())
sys.stderr.write(f"vgpr {NVGPR} (D {maxD} E {maxE}) nops {a.nops} stat {a.stat} lds {LDS}\n")
```

```python
import re

class Asm:
    def __init__(self):
        self.lines = []
        self.pos = 0
        self.last_write = {}
        self.last_mfma_cread = {}
        self.sgpr_valu_write = {}
        self.m0_write = -100
        self.lds_q = []
        self.vm_q = []
        self.nops = 0
        self.stat = {}

    def raw(self, text):
        self.lines.append(text)

    def comment(self, text):
        self.lines.append("    ; " + text)

    def _emit(self, text, n=1):
        self.lines.append("    " + text)
        self.pos += n

    def nop(self, n):
        while n > 0:
            k = min(n, 16)
            self._emit(f"s_nop {k-1}", k)
            self.nops += k
            n -= k

    def _need(self, at_least_pos):
        if self.pos < at_least_pos:
            self.nop(at_least_pos - self.pos)

    def wait_lds_for(self, regs):
        regs = set(regs)
        idx = -1
        for i, d in enumerate(self.lds_q):
            if d & regs:
                idx = i
        if idx >= 0:
            n = len(self.lds_q) - 1 - idx
            self._emit(f"s_waitcnt lgkmcnt({min(n,15)})")
            self.lds_q = self.lds_q[idx + 1:] if n <= 15 else self.lds_q[len(self.lds_q)-15:]

    def wait_lds_all(self):
        self._emit("s_waitcnt lgkmcnt(0)")
        self.lds_q = []

    def wait_vm_for(self, regs=(), tag=None):
        regs = set(regs)
        idx = -1
        for i, (t, d) in enumerate(self.vm_q):
            if (d & regs) or (tag is not None and t == tag):
                idx = i
        if idx >= 0:
            n = len(self.vm_q) - 1 - idx
            self._emit(f"s_waitcnt vmcnt({n})")
            self.vm_q = self.vm_q[idx + 1:]

    def ins(self, kind, text, rd=(), wr=(), srd=(), swr=(), cread=(), tag=None, ctuple=None):
        rd = list(rd); wr = list(wr)
        self.wait_lds_for(rd + wr)
        self.wait_vm_for(rd + wr)
        need = self.pos
        isvalu = kind in ("valu", "trans", "dot")
        for r in rd:
            w = self.last_write.get(r)
            if not w: continue
            p, k, tup, op = w
            if k in ("valu", "trans", "dot") and kind == "mfma":
                need = max(need, p + 1 + 2)
            if k == "trans" and kind in ("valu", "dot"):
                need = max(need, p + 1 + 1)
            if k == "dot" and not (kind == "dot"):
                need = max(need, p + 1 + 3)
            if k == "dot" and kind == "dot":
                need = max(need, p + 1 + 3)
            if k == "mfma":
                if kind == "mfma":
                    if r in cread and ctuple == tup:
                        pass
                    elif r in cread:
                        need = max(need, p + 1 + 6)
                    else:
                        need = max(need, p + 1 + 8)
                else:
                    need = max(need, p + 1 + 8)
            if k in ("valu", "trans", "dot") and kind == "rfl":
                need = max(need, p + 1 + 1)
        for r in wr:
            w = self.last_write.get(r)
            if w:
                p, k, tup, op = w
                if k == "mfma" and not (kind == "mfma" and ctuple == tup and r in cread):
                    need = max(need, p + 1 + 8)
                if k == "dot" and kind != "dot":
                    need = max(need, p + 1 + 3)
            c = self.last_mfma_cread.get(r)
            if c is not None and kind != "mfma":
                need = max(need, c + 1 + 3)
        for s in srd:
            p = self.sgpr_valu_write.get(s)
            if p is not None:
                if kind in ("vmem", "vmemst", "dma"):
                    need = max(need, p + 1 + 5)
                elif isvalu:
                    need = max(need, p + 1 + 2)
        if kind == "dma":
            need = max(need, self.m0_write + 1 + 1)
        self._need(need)
        p = self.pos
        self._emit(text)
        self.stat[kind] = self.stat.get(kind, 0) + 1
        for r in wr:
            if kind in ("valu", "trans", "dot", "mfma"):
                self.last_write[r] = (p, kind, tuple(wr), text.split()[0])
            else:
                self.last_write.pop(r, None)
        for r in cread:
            self.last_mfma_cread[r] = p
        for s in swr:
            if kind in ("valu", "rfl"):
                self.sgpr_valu_write[s] = p
            else:
                self.sgpr_valu_write.pop(s, None)
            if s == "m0":
                self.m0_write = p
        if kind == "ds":
            self.lds_q.append(set(wr))
        elif kind == "dsw":
            self.lds_q.append(set())
        elif kind in ("vmem", "dma", "vmemst"):
            self.vm_q.append((tag, set(wr)))

    @staticmethod
    def vr(a, n=1):
        return f"v{a}" if n == 1 else f"v[{a}:{a+n-1}]"

    def valu(self, op, dst, *srcs, kind="valu", nd=1, ns=1):
        rd = []; txt = []
        for s in srcs:
            if isinstance(s, int):
                rd += list(range(s, s + ns)); txt.append(self.vr(s, ns))
            else:
                txt.append(s)
        srd = [t for t in txt if re.match(r"^s\d+$", t)]
        for t in txt:
            m = re.match(r"^s\[(\d+):(\d+)\]$", t)
            if m: srd += [f"s{i}" for i in range(int(m.group(1)), int(m.group(2)) + 1)]
        self.ins(kind, f"{op} {self.vr(dst, nd)}, " + ", ".join(txt), rd=rd, wr=range(dst, dst + nd), srd=srd)

    def salu(self, text, swr=()):
        self.ins("salu", text, swr=swr)

    def mfma(self, d, a, b, c):
        rd = list(range(a, a + 4)) + list(range(b, b + 4))
        cr = []
        if isinstance(c, int):
            cr = list(range(c, c + 4)); rd += cr; ct = self.vr(c, 4)
        else:
            ct = c
        self.ins("mfma", f"v_mfma_f32_16x16x32_bf16 {self.vr(d,4)}, {self.vr(a,4)}, {self.vr(b,4)}, {ct}",
                 rd=rd, wr=range(d, d + 4), cread=cr, ctuple=tuple(cr))

    def mfma16(self, d, a, b, c):
        rd = list(range(a, a + 2)) + list(range(b, b + 2))
        cr = []
        if isinstance(c, int):
            cr = list(range(c, c + 4)); rd += cr; ct = self.vr(c, 4)
        else:
            ct = c
        self.ins("mfma", f"v_mfma_f32_16x16x16_bf16 {self.vr(d,4)}, {self.vr(a,2)}, {self.vr(b,2)}, {ct}",
                 rd=rd, wr=range(d, d + 4), cread=cr, ctuple=tuple(cr))

    def ds_read(self, op, dst, n, addr, off=0):
        self.ins("ds", f"{op} {self.vr(dst, n)}, v{addr}" + (f" offset:{off}" if off else ""), rd=[addr], wr=range(dst, dst + n))

    def ds_write(self, op, addr, src, n, off=0):
        self.ins("dsw", f"{op} v{addr}, {self.vr(src, n)}" + (f" offset:{off}" if off else ""), rd=[addr] + list(range(src, src + n)))

    def text(self):
        return "\n".join(self.lines) + "\n"
```

```python
import sys, struct, argparse
from asmlib import Asm
ap = argparse.ArgumentParser()
ap.add_argument("--ts", type=int, default=0)
ap.add_argument("--wpw", type=int, default=4)
ap.add_argument("--depth", type=int, default=2)
ap.add_argument("--execmfma", type=int, default=0)
args = ap.parse_args()
TS, WPW, DEPTH = args.ts, args.wpw, args.depth

NAME = "standalone__sequential_behavior_din__recsys_kernel"
NWG = 4096 // WPW
S_HEX = "0xbfb8aa3b"
IMG_ACS, IMG_WDS, IMG_AP, IMG_B1 = 0, 1024, 2048, 3072
WAVE0 = 3200
H_OFF, R_OFF, TF_OFF, TR_OFF, WSZ = 0, 6656, 6656 + 1792, 6656 + 1792 + 256, 8832
RP = 448
LDS = WAVE0 + WPW * WSZ

a = Asm()
hdr = open("standalone__sequential_behavior_din__recsys.s.ref").read().split("; Override")[0]
a.raw(hdr.rstrip())
a.raw(f"; @launch grid=({NWG},1,1) block=({64*WPW},1,1) lds={LDS}")
a.raw('.amdgcn_target "amdgcn-amd-amdhsa--gfx950"')
a.raw(".text")
a.raw(f".globl {NAME}")
a.raw(".p2align 8")
a.raw(f".type {NAME},@function")
a.raw(f"{NAME}:")

nv = [1]
def V(n=1, al=None):
    al = al or (2 if n > 1 else 1)
    while nv[0] % al: nv[0] += 1
    r = nv[0]; nv[0] += n
    return r
vLane = V(); vL16 = V(); vA1 = V(); vA3 = V(); vAB3 = V(); vAW = V(); vOut = V()
vM = V(4)
A2a = V(4); A2b = V(4); C2 = V(4)
Aj = [V(2) for _ in range(4)]
Cj = [V(4) for _ in range(4)]
D3 = V(4)
base_tmp = nv[0]
vT16 = V(); vTg = V()
ACS = V(4); WDS = V(4); AP = V(4); B1S = V(4)
T = [V(4) for _ in range(4)]; TR = [V(4) for _ in range(4)]
wa = V(); wb = V(); wc = V(); wd = V(); b1v = V(); tv = V(); w2p = V(2)
vL2 = V(); vT2 = V(); vN = V(); vG = V(); t0 = V(); t1 = V(); t2 = V(); t3 = V()
vPA = V(); return_ = None; vPP = V(); vACS = V(); vB1S = V()
Z4 = V(4)
maxD = nv[0]
nv[0] = base_tmp
B1 = [[V(2), V(2)] for _ in range(2)]
D1 = [[V(4), V(4)] for _ in range(2)]
D1x = V(4)
Sg = [V(4) for _ in range(2)]
D2 = V(4)
A3 = [V(4) for _ in range(2)]
B3 = [V(4) for _ in range(2)]
sc = V(); o01 = V(2)
maxE = nv[0]
NVGPR = max(maxD, maxE)

stamps = []
def stamp():
    if TS >= 2:
        r = 68 + 2 * len(stamps)
        a.salu(f"s_memrealtime s[{r}:{r+1}]")
        stamps.append(r)
a.salu(f"s_cmp_ge_u32 s2, {NWG}")
a.salu("s_cbranch_scc1 L_done")
if TS:
    a.salu("s_memrealtime s[60:61]")
    a.salu("s_memtime s[90:91]")
    a.salu("s_load_dwordx2 s[64:65], s[0:1], 72")
a.salu("s_load_dwordx16 s[4:19], s[0:1], 0")
a.valu("v_lshrrev_b32", t0, "6", 0)
a.valu("v_and_b32", vLane, "63", 0)
a.ins("rfl", f"v_readfirstlane_b32 s3, v{t0}", rd=[t0], swr=["s3"])
for r in (wa, wb, wc, wd, b1v, tv, C2, vM, vM + 1, vM + 2, vM + 3, Z4, Z4 + 1, Z4 + 2, Z4 + 3):
    a.valu("v_mov_b32", r, "0")
a.valu("v_add_u32", vT2, 0, 0)
a.valu("v_add_u32", vL2, vLane, vLane)
a.valu("v_lshlrev_b32", vL16, "4", vLane)
a.valu("v_and_b32", vN, "15", vLane)
a.valu("v_lshrrev_b32", vG, "4", vLane)
a.valu("v_add_u32", t1, vN, vN)
a.valu("v_lshlrev_b32", t2, "3", vG)
a.salu(f"s_mul_i32 s32, s2, {WPW}")
a.salu("s_add_u32 s32, s32, s3")
a.salu("s_mul_i32 s33, s32, 6400")
a.salu("s_mul_i32 s34, s32, 400")
a.salu("s_lshl_b32 s35, s32, 7")
a.salu(f"s_mul_i32 s36, s3, {WSZ}")
a.salu(f"s_add_u32 s36, s36, {WAVE0}")
a.salu(f"s_mov_b32 s37, {S_HEX}")
a.salu("s_add_u32 s38, s33, 4096")
a.salu("s_mov_b32 s22, %d" % (16384 * 1600))
a.salu("s_mov_b32 s23, 0x20000")
a.salu("s_mov_b32 s26, %d" % (16384 * 100))
a.salu("s_mov_b32 s27, 0x20000")
a.salu("s_mov_b32 s30, %d" % (16384 * 32))
a.salu("s_mov_b32 s31, 0x20000")
a.salu("s_mov_b32 s46, %d" % (16384 * 32))
a.salu("s_mov_b32 s47, 0x20000")
a.salu("s_mov_b32 m0, s36", swr=["m0"])
a._emit("s_waitcnt lgkmcnt(0)")
stamp()
if WPW > 4:
    a.salu("s_cmp_ge_u32 s3, 4")
    a.salu("s_cbranch_scc1 L_skipw")
for i, r in enumerate((wa, wb, wc, wd)):
    a.ins("vmem", f"global_load_short_d16_hi v{r}, v{vT2}, s[10:11]" + (f" offset:{512*i}" if i else ""), rd=[vT2, r], wr=[r])
a.ins("vmem", f"global_load_short_d16_hi v{b1v}, v{t1}, s[12:13]", rd=[t1, b1v], wr=[b1v])
if WPW > 4:
    a.raw("L_skipw:")
a.salu("s_mov_b32 s44, s4")
a.salu("s_and_b32 s45, s5, 0xffff")
a.ins("vmem", f"buffer_load_short_d16_hi v{tv}, v{vL2}, s[44:47], s35 offen", rd=[vL2, tv], wr=[tv])
a.ins("vmem", f"global_load_dwordx2 v[{w2p}:{w2p+1}], v{t2}, s[14:15]", rd=[t2], wr=[w2p, w2p + 1])
a.ins("vmem", f"global_load_short_d16_hi v{C2}, v{Z4}, s[16:17]", rd=[Z4, C2], wr=[C2])
a.salu("s_mov_b32 s24, s8")
a.salu("s_and_b32 s25, s9, 0xffff")
a.salu("s_mov_b32 s20, s6")
a.salu("s_and_b32 s21, s7, 0xffff")
def dma(k):
    if k == 4:
        a.salu("s_add_u32 m0, s36, 4096", swr=["m0"])
    if k == 6:
        a.salu("s_mov_b32 exec_hi, 0")
    so = "s33" if k < 4 else "s38"
    off = (k % 4) * 1024
    a.ins("dma", f"buffer_load_dwordx4 v{vL16}, s[20:23], {so} offen" + (f" offset:{off}" if off else "") + " lds", rd=[vL16], tag=f"h{k}")
    if k == 6:
        a.salu("s_mov_b32 exec_hi, -1")
dma(0)
for G in range(4):
    a.ins("vmem", f"buffer_load_short_d16_hi v{vM+G}, v{vL2}, s[24:27], s34 offen" + (f" offset:{128*G}" if G else ""), rd=[vL2, vM + G], wr=[vM + G])
for k in range(1, min(DEPTH, 7)):
    dma(k)
a.salu("s_mov_b32 s28, s18")
a.salu("s_and_b32 s29, s19, 0xffff")
a.valu("v_and_b32", t0, "1", vG)
a.valu("v_lshlrev_b32", t3, "5", vN)
a.valu("v_add_u32", vOut, t2, t3)
a.valu("v_add_u32", vA1, "s36", vOut)
a.valu("v_lshl_add_u32", vA3, vLane, "3", "s36")
a.valu("v_lshl_add_u32", vT16, t0, "4", "s36")
a.valu("v_add_u32", vB1S, t2, t2)
a.valu("v_add_u32", vTg, "s36", vB1S)
a.valu("v_lshl_add_u32", vACS, vN, "6", vB1S)
a.valu("v_and_b32", t3, "3", vN)
a.valu("v_mul_u32_u24", t3, str(RP), t3)
a.valu("v_add_u32", vAB3, t3, vTg)
a.valu("v_lshrrev_b32", t3, "5", vLane)
a.valu("v_lshl_add_u32", vAW, t3, "6", "s36")
a.valu("v_bfe_u32", t3, vLane, "2", "2")
a.valu("v_lshl_add_u32", vAW, t3, "4", vAW)
a.valu("v_lshl_add_u32", vAW, t0, "3", vAW)
a.valu("v_and_b32", t3, "3", vLane)
a.valu("v_lshl_add_u32", vAW, t3, "1", vAW)
a.valu("v_add_u32", t3, "s36", vL16)
a.ds_write("ds_write_b128", t3, Z4, 4, R_OFF)
a.ds_write("ds_write_b128", t3, Z4, 4, R_OFF + 1024)
if WPW > 4:
    a.salu("s_cmp_ge_u32 s3, 4")
    a.salu("s_cbranch_scc1 L_skipp")
a.valu("v_lshrrev_b32", t3, "4", 0)
a.valu("v_lshlrev_b32", vPA, "6", vN)
a.valu("v_lshl_add_u32", vPA, t3, "2", vPA)
a.valu("v_lshrrev_b32", t1, "3", t3)
a.valu("v_lshlrev_b32", vPP, "8", t1)
a.valu("v_lshl_add_u32", vPP, vN, "4", vPP)
a.valu("v_and_b32", t3, "7", t3)
a.valu("v_lshl_add_u32", vPP, t3, "1", vPP)
a.valu("v_lshlrev_b32", t3, "2", vN)
a.valu("v_add_f32", wa, wa, wc)
a.valu("v_sub_f32", wb, wb, wc)
a.valu("v_mul_f32", wa, "s37", wa)
a.valu("v_mul_f32", wd, "s37", wd)
a.valu("v_mul_f32", wb, "s37", wb)
a.ds_write("ds_write_b32", vPA, wa, 1, IMG_ACS)
a.ds_write("ds_write_b32", vPA, wd, 1, IMG_WDS)
a.valu("v_cvt_pk_bf16_f32", t1, wb, wb)
a.valu("v_mul_f32", b1v, "s37", b1v)
a.valu("v_lshlrev_b32", t2, "16", t1)
a.valu("v_sub_f32", t2, wb, t2)
a.valu("v_cvt_pk_bf16_f32", t2, t2, t2)
a.ds_write("ds_write_b16", vPP, t1, 1, IMG_AP)
a.ds_write("ds_write_b16", vPP, t2, 1, IMG_AP + 512)
a.ds_write("ds_write_b32", t3, b1v, 1, IMG_B1)
if WPW > 4:
    a.raw("L_skipp:")
a.valu("v_lshl_add_u32", t3, vLane, "2", "s36")
a.valu("v_add_u32", t1, "s36", vL2)
a.ds_write("ds_write_b32", t3, tv, 1, TF_OFF)
a.ds_write("ds_write_b16_d16_hi", t1, tv, 1, TR_OFF)
for j in range(4):
    a.ds_read("ds_read_b128", T[j], 4, vTg, TF_OFF + 64 * j)
    a.ds_read("ds_read_b128", TR[j], 4, vT16, TR_OFF + 32 * j)
for i, (dst, row) in enumerate(((A2a, 0), (A2a + 2, 4), (A2b, 8), (A2b + 2, 12))):
    m = (1 << row) | (1 << (row + 16))
    a.salu(f"s_mov_b32 s{48+2*i}, {m:#x}")
    a.salu(f"s_mov_b32 s{49+2*i}, {m:#x}")
for i, (dst, row) in enumerate(((A2a, 0), (A2a + 2, 4), (A2b, 8), (A2b + 2, 12))):
    a.valu("v_cndmask_b32", dst, "0", w2p, f"s[{48+2*i}:{49+2*i}]")
    a.valu("v_cndmask_b32", dst + 1, "0", w2p + 1, f"s[{48+2*i}:{49+2*i}]")
a.wait_lds_all()
stamp()
a._emit("s_barrier")
a.ds_read("ds_read_b128", ACS, 4, vACS, IMG_ACS)
a.ds_read("ds_read_b128", WDS, 4, vACS, IMG_WDS)
a.ds_read("ds_read_b128", AP, 4, vL16, IMG_AP)
a.ds_read("ds_read_b128", B1S, 4, vB1S, IMG_B1)
for j in range(4):
    for k in range(4):
        a.valu("v_fma_f32", T[j] + k, T[j] + k, WDS + k, ACS + k)
for j in range(4):
    a.mfma(Cj[j], AP, TR[j], B1S)
for j in range(4):
    a.valu("v_cvt_pk_bf16_f32", Aj[j], T[j], T[j] + 1)
    a.valu("v_cvt_pk_bf16_f32", Aj[j] + 1, T[j] + 2, T[j] + 3)

NT = 13
def tile_info(q):
    i0 = 16 * q
    ja = min(i0 // 50, 3); jb = min((i0 + 15) // 50, 3)
    n0 = 50 * jb - i0 if jb != ja else None
    return ja, jb, n0
smask = {}; spat = {}
sreg = 48
for q in range(NT):
    ja, jb, n0 = tile_info(q)
    if n0 is not None:
        pat = (0xFFFF << n0) & 0xFFFF; pat |= pat << 16
        spat[q] = pat
        if not args.execmfma:
            a.salu(f"s_mov_b32 s{sreg}, {pat:#x}")
            a.salu(f"s_mov_b32 s{sreg+1}, {pat:#x}")
            smask[q] = f"s[{sreg}:{sreg+1}]"; sreg += 2

NP = 7
def tiles(P): return [q for q in (2 * P, 2 * P + 1) if q < NT]
def L(P):
    a.wait_vm_for(tag=f"h{P}")
    if P + DEPTH < 7: dma(P + DEPTH)
    for i, q in enumerate(tiles(P)):
        a.ds_read("ds_read_b64", B1[P % 2][i], 2, vA1, H_OFF + 512 * q)
def M(P):
    for i, q in enumerate(tiles(P)):
        ja, jb, n0 = tile_info(q)
        if n0 is not None and args.execmfma:
            a.salu(f"s_mov_b32 exec_lo, {(~spat[q]) & 0xffffffff:#x}")
            a.salu(f"s_mov_b32 exec_hi, {(~spat[q]) & 0xffffffff:#x}")
            a.mfma16(D1[P % 2][i], Aj[ja], B1[P % 2][i], Cj[ja])
            a.salu(f"s_mov_b32 exec_lo, {spat[q]:#x}")
            a.salu(f"s_mov_b32 exec_hi, {spat[q]:#x}")
            a.mfma16(D1[P % 2][i], Aj[jb], B1[P % 2][i], Cj[jb])
            a.salu("s_mov_b64 exec, -1")
            continue
        a.mfma16(D1[P % 2][i], Aj[ja], B1[P % 2][i], Cj[ja])
        if n0 is not None:
            a.mfma16(D1x, Aj[jb], B1[P % 2][i], Cj[jb])
def Sel(P):
    if args.execmfma: return
    for i, q in enumerate(tiles(P)):
        ja, jb, n0 = tile_info(q)
        if n0 is not None:
            for r in range(4):
                a.valu("v_cndmask_b32", D1[P % 2][i] + r, D1[P % 2][i] + r, D1x + r, smask[q])
def Sg_(P):
    ts = tiles(P)
    regs = [D1[P % 2][i] + r for i in range(len(ts)) for r in range(4)]
    for r in regs: a.valu("v_exp_f32", r, r, kind="trans")
    for r in regs: a.valu("v_add_f32", r, "1.0", r)
    for r in regs: a.valu("v_rcp_f32", r, r, kind="trans")
    for i in range(len(ts)):
        d = D1[P % 2][i]
        a.valu("v_cvt_pk_bf16_f32", Sg[P % 2] + 2 * i, d, d + 1)
        a.valu("v_cvt_pk_bf16_f32", Sg[P % 2] + 2 * i + 1, d + 2, d + 3)
def W(P):
    if P % 2 == 0: a.mfma(D2, A2a, Sg[0], C2)
    else: a.mfma(D2, A2b, Sg[1], D2)
RW = {0: [(0, 50, 0), (50, 64, 1)], 1: [(0, 36, 1), (36, 64, 2)], 2: [(0, 22, 2), (22, 64, 3)], 3: [(0, 8, 3)]}
def Xs(G):
    a.valu("v_mul_f32", sc, D2, vM + G)
    a.valu("v_cvt_pk_bf16_f32", sc, sc, sc)
    for lo, hi, j in RW[G]:
        m = ((1 << hi) - 1) & ~((1 << lo) - 1)
        a.salu(f"s_mov_b32 exec_lo, {m & 0xffffffff:#x}")
        a.salu(f"s_mov_b32 exec_hi, {m >> 32:#x}")
        a.ds_write("ds_write_b16", vAW, sc, 1, R_OFF + j * RP + G * 128)
    a.salu("s_mov_b64 exec, -1")
    for i, c in enumerate((2 * G, 2 * G + 1)):
        if c > 6: continue
        a.ds_read("ds_read_b64_tr_b16", A3[i], 2, vA3, H_OFF + c * 1024)
        a.ds_read("ds_read_b64_tr_b16", A3[i] + 2, 2, vA3, H_OFF + c * 1024 + 512)
        a.ds_read("ds_read_b128", B3[i], 4, vAB3, R_OFF + c * 64)
def Y(G):
    for i, c in enumerate((2 * G, 2 * G + 1)):
        if c > 6: continue
        a.mfma(D3, A3[i], B3[i], "0" if c == 0 else D3)

stamp()
L(0); L(1)
M(0)
for P in range(NP):
    if P in (2, 4, 6): stamp()
    Sel(P)
    if P + 1 < NP: M(P + 1)
    if P >= 2 and P % 2 == 0: Xs((P - 2) // 2)
    if P + 2 < NP: L(P + 2)
    Sg_(P)
    if P >= 2 and P % 2 == 0: Y((P - 2) // 2)
    W(P)
Xs(3)
Y(3)
a.valu("v_cvt_pk_bf16_f32", o01, D3, D3 + 1)
a.valu("v_cvt_pk_bf16_f32", o01 + 1, D3 + 2, D3 + 3)
a.salu("s_mov_b32 exec_lo, 0x000f000f")
a.salu("s_mov_b32 exec_hi, 0x000f000f")
a.ins("vmemst", f"buffer_store_dwordx2 v[{o01}:{o01+1}], v{vOut}, s[28:31], s35 offen", rd=[o01, o01 + 1, vOut])
if TS:
    a.raw("""    s_waitcnt vmcnt(0)
    s_memrealtime s[62:63]
    s_memtime s[92:93]
    s_lshl_b32 s66, s32, 4
    v_mov_b32 v1, s66
    s_waitcnt lgkmcnt(0)
    v_mov_b32 v4, s60
    s_sub_u32 s92, s92, s90
    v_mov_b32 v5, s92
    v_mov_b32 v6, s62
    v_mov_b32 v7, 0
    s_mov_b64 exec, 1
    global_store_dwordx4 v1, v[4:7], s[64:65]""")
    if TS >= 2:
        a.raw("    s_lshl_b32 s66, s32, 5\n    s_add_u32 s66, s66, 0x100000\n    v_mov_b32 v1, s66")
        st = [60] + stamps + [62]
        assert len(st) == 8
        for i, r in enumerate(st):
            a.raw(f"    v_mov_b32 v{8+i}, s{r}")
        a.raw("    global_store_dwordx4 v1, v[8:11], s[64:65]\n    global_store_dwordx4 v1, v[12:15], s[64:65] offset:16")
a.raw("L_done:")
a.raw("    s_endpgm")
acc = (NVGPR + 3) // 4 * 4
a.raw(f""".section .rodata,"a"
.p2align 6
.amdhsa_kernel {NAME}
  .amdhsa_next_free_vgpr {NVGPR}
  .amdhsa_next_free_sgpr {96 if TS else 64}
  .amdhsa_accum_offset {acc}
  .amdhsa_group_segment_fixed_size 0
  .amdhsa_kernarg_size 80
  .amdhsa_user_sgpr_count 2
  .amdhsa_user_sgpr_kernarg_segment_ptr 1
  .amdhsa_system_sgpr_workgroup_id_x 1
.end_amdhsa_kernel""")
sys.stdout.write(a.text())
sys.stderr.write(f"vgpr {NVGPR} (D {maxD} E {maxE}) nops {a.nops} stat {a.stat} lds {LDS}\n")
```

```python
import sys, argparse
from asmlib import Asm
ap = argparse.ArgumentParser()
ap.add_argument("--ts", type=int, default=0)
ap.add_argument("--depth", type=int, default=7)
ap.add_argument("--sched", type=int, default=0)
ap.add_argument("--forceslow", type=int, default=32)
ap.add_argument("--dbg", type=str, default="")
ap.add_argument("--dmapos", type=int, default=0)
ap.add_argument("--sleep", type=int, default=0)
ap.add_argument("--pre", type=int, default=0)
ap.add_argument("--pre2", type=int, default=0)
ap.add_argument("--skip", type=str, default="")
ap.add_argument("--early", type=int, default=1)
ap.add_argument("--cfga", type=str, default="1:7")
ap.add_argument("--cfgb", type=str, default="")
ap.add_argument("--ynop", type=int, default=0)
ap.add_argument("--ypre", type=int, default=0)
args = ap.parse_args()
TS, DEPTH = args.ts, args.depth
WPW = 4

NAME = "standalone__sequential_behavior_din__recsys_kernel"
NWG = 4096 // WPW
S_HEX = "0xbfb8aa3b"
KSH = 24
SC_F32 = (127 - KSH) << 23
SC_BF = (127 - KSH) << 7
IMG_ACS, IMG_B1, IMG_W2, IMG_WDS, IMG_AP = 64, 1088, 1152, 1664, 3264
WAVE0 = 4864
H_OFF, L_OFF, SB_OFF, TF_OFF, TR_OFF, WSZ = 0, 6400, 7424, 8448, 8704, 8832
LDS = WAVE0 + WPW * WSZ

a = Asm()
hdr = open("standalone__sequential_behavior_din__recsys.s.ref").read().split("; Override")[0]
a.raw(hdr.rstrip())
a.raw(f"; @launch grid=({NWG},1,1) block=({64*WPW},1,1) lds={LDS}")
a.raw('.amdgcn_target "amdgcn-amd-amdhsa--gfx950"')
a.raw(".text")
a.raw(f".globl {NAME}")
a.raw(".p2align 8")
a.raw(f".type {NAME},@function")
a.raw(f"{NAME}:")

nv = [1]
def V(n=1, al=None):
    al = al or (2 if n > 1 else 1)
    while nv[0] % al: nv[0] += 1
    r = nv[0]; nv[0] += n
    return r
vG8 = V(); vC8 = V(); vE1a = V(); vE3a = V(); vEMa = V(); vAW = V(); vAB3 = V(); vOut = V(); vL16 = V()
W4 = V(4); A2 = V(2); C2 = V(4); vS = C2 + 1
Aj = [V(2) for _ in range(4)]
Cj = [V(4) for _ in range(4)]
D3 = V(4)
base_tmp = nv[0]
ACS = V(4); WDS = V(4); AP = V(4); B1S = V(4)
T = [V(4) for _ in range(4)]; TR = [V(4) for _ in range(4)]
maxD1 = nv[0]
nv[0] = base_tmp
B1 = [[V(2), V(2)] for _ in range(2)]
D1 = [[V(4), V(4)] for _ in range(2)]
A3 = [V(4) for _ in range(2)]
B3 = [V(4), None]; D2 = V(4)
P = [V(2), V(2)]
tn = [V(2), V(2)]
maxE1 = nv[0]
nv[0] = max(maxD1, maxE1)
base2 = nv[0]
wa = V(4, 4); wb = wa + 1; wc = wa + 2; wd = wa + 3
b1v = V(); w2v = V(); tv = V()
vM = V(4)
vLane = V(); vL2 = V(); vT2 = V(); vN = V(); vG = V(); t0 = V(); t1 = V(); t2 = V(); t3 = V()
vPA = V(); vPP = V(); vACS = V(); vB16 = V(); vT16 = V(); vTg = V(); vU = V(); vRow = V(); vTw = V()
maxD2 = nv[0]
nv[0] = base2
GA1 = V(8); GA3 = V(8); EM = V(2); B3[1] = V(4); sc = V(); o01 = V(2)
maxE2 = nv[0]
NVGPR = max(maxD2, maxE2)
rk = [T[0], T[0] + 1, T[0] + 2, T[0] + 3]

stamps = []
def stamp(idx=None):
    if TS >= 2:
        r = 68 + 2 * (len(stamps) if idx is None else idx)
        a.salu(f"s_memrealtime s[{r}:{r+1}]")
        if r not in stamps: stamps.append(r)
a.salu(f"s_cmp_ge_u32 s2, {NWG}")
a.salu("s_cbranch_scc1 L_done")
if TS:
    a.salu("s_memrealtime s[60:61]")
    a.salu("s_memtime s[90:91]")
    a.salu("s_load_dwordx2 s[64:65], s[0:1], 72")
a.salu("s_load_dwordx16 s[4:19], s[0:1], 0")
a.salu("s_getreg_b32 s52, hwreg(HW_REG_HW_ID, 0, 4)")
a.valu("v_lshrrev_b32", t0, "6", 0)
a.valu("v_and_b32", vLane, "63", 0)
a.ins("rfl", f"v_readfirstlane_b32 s3, v{t0}", rd=[t0], swr=["s3"])
for r in (wa, wb, wc, wd):
    a.valu("v_mov_b32", r, "0")
a.valu("v_add_u32", vT2, 0, 0)
a.valu("v_add_u32", vL2, vLane, vLane)
a.valu("v_lshlrev_b32", vL16, "4", vLane)
a.valu("v_and_b32", vN, "15", vLane)
a.valu("v_lshrrev_b32", vG, "4", vLane)
a.valu("v_add_u32", t1, vN, vN)
a.salu(f"s_mul_i32 s36, s3, {WSZ}")
a.salu(f"s_add_u32 s36, s36, {WAVE0}")
a.salu(f"s_lshl_b32 s32, s2, 2")
a.salu("s_add_u32 s32, s32, s3")
a.salu("s_mul_i32 s33, s32, 6400")
a.salu("s_mul_i32 s34, s32, 400")
a.salu("s_lshl_b32 s35, s32, 7")
a.salu(f"s_add_u32 s41, s36, {L_OFF}")
a.salu(f"s_mov_b32 s37, {S_HEX}")
a.salu("s_add_u32 s38, s33, 4096")
a.salu("s_mov_b32 s22, %d" % (16384 * 1600))
a.salu("s_mov_b32 s23, 0x20000")
a.salu("s_mov_b32 s26, %d" % (16384 * 100))
a.salu("s_mov_b32 s27, 0x20000")
a.salu("s_mov_b32 s30, %d" % (16384 * 32))
a.salu("s_mov_b32 s31, 0x20000")
a.salu("s_mov_b32 s46, %d" % (16384 * 32))
a.salu("s_mov_b32 s47, 0x20000")
a.salu("s_mov_b32 m0, s36", swr=["m0"])
a.valu("v_add_u32", t3, "s41", vL16)
a.valu("v_add_u32", t2, t1, t1)
a.ds_write("ds_write_b128", t3, wa, 4, 0)
a.ds_write("ds_write_b128", t3, wa, 4, 1024)
for j in range(4):
    a.ds_write("ds_write_b32", t2, wa, 1, 1600 * j)
a.wait_lds_all()
stamp()
a.ins("vmem", f"global_load_short_d16_hi v{C2}, v{wd}, s[16:17]", rd=[wd], wr=[C2])
for i, r in enumerate((wa, wb, wc, wd)):
    a.ins("vmem", f"global_load_short_d16_hi v{r}, v{vT2}, s[10:11]" + (f" offset:{512*i}" if i else ""), rd=[vT2, r], wr=[r])
a.ins("vmem", f"global_load_short_d16_hi v{b1v}, v{t1}, s[12:13]", rd=[t1, b1v], wr=[b1v])
a.ins("vmem", f"global_load_short_d16_hi v{w2v}, v{t1}, s[14:15]", rd=[t1, w2v], wr=[w2v])
a.salu("s_mov_b32 s44, s4")
a.salu("s_and_b32 s45, s5, 0xffff")
a.ins("vmem", f"buffer_load_short_d16_hi v{tv}, v{vL2}, s[44:47], s35 offen", rd=[vL2, tv], wr=[tv])
a.salu("s_mov_b32 s24, s8")
a.salu("s_and_b32 s25, s9, 0xffff")
for j in range(4):
    a.ins("vmem", f"buffer_load_short_d16_hi v{vM+j}, v{vL2}, s[24:27], s34 offen" + (f" offset:{100*j}" if j else ""), rd=[vL2, vM + j], wr=[vM + j])
a.salu("s_mov_b32 s20, s6")
a.salu("s_and_b32 s21, s7, 0xffff")
def dma(k):
    if "D" in args.skip and k > 0:
        a.vm_q.append((f"h{k}", set())); a._emit("s_nop 0"); a.vm_q.pop(); return
    if k == 4:
        a.salu("s_add_u32 m0, s36, 4096", swr=["m0"])
    if k == 6:
        a.salu("s_mov_b64 exec, 0xffff")
    so = "s33" if k < 4 else "s38"
    off = (k % 4) * 1024
    a.ins("dma", f"buffer_load_dwordx4 v{vL16}, s[20:23], {so} offen" + (f" offset:{off}" if off else "") + " lds", rd=[vL16], tag=f"h{k}")
    if k == 6:
        a.salu("s_mov_b64 exec, -1")
issued = [0]
def dma_upto(n):
    while issued[0] < min(n, 7):
        dma(issued[0]); issued[0] += 1
rk = [wa, wb, wc, wd]
def rd2(dst, addr, o0, o1):
    a.ins("ds", f"ds_read2_b32 v[{dst}:{dst+1}], v{addr} offset0:{o0} offset1:{o1}", rd=[addr], wr=[dst, dst + 1])
def gadd(r, off):
    a.valu("v_and_or_b32", r, r, "s39", off)
def prologue(cfg):
    dma_upto(cfg.get(0, 0))
    a.salu("s_mov_b32 s28, s18")
    a.salu("s_and_b32 s29, s19, 0xffff")
    a.salu("s_mov_b32 s39, 0xffff")
    a.salu("s_lshl_b32 s49, s3, 8")
    a.salu("s_lshl_b32 s50, s3, 7")
    a.salu("s_and_b32 s50, s50, 0x100")
    a.salu("s_and_b32 s51, s3, 1")
    a.salu("s_lshl3_add_u32 s50, s51, s50")
    a.salu(f"s_mov_b32 s40, {SC_F32:#x}")
    a.salu(f"s_mov_b32 s42, {float(-KSH).hex() and 0xc1c00000:#x}")
    a.valu("v_lshlrev_b32", vG8, "3", vG)
    a.valu("v_lshl_add_u32", vOut, vN, "5", vG8)
    a.valu("v_add_u32", vB16, vG8, vG8)
    a.valu("v_add_u32", vTg, "s36", vB16)
    a.valu("v_and_b32", t0, "16", vLane)
    a.valu("v_add_u32", vT16, "s36", t0)
    a.valu("v_and_b32", t3, "3", vLane)
    a.valu("v_lshlrev_b32", vC8, "3", t3)
    a.valu("v_lshl_add_u32", vAB3, t3, "6", vTg)
    a.valu("v_add_u32", vE1a, "s41", t2)
    a.valu("v_lshl_add_u32", t3, vG, "5", "s41")
    a.valu("v_and_or_b32", vE3a, vLane, "12", t3)
    a.valu("v_lshl_add_u32", vU, vLane, "2", "s41")
    a.valu("v_lshrrev_b32", t3, "5", vLane)
    a.valu("v_lshl_add_u32", vEMa, t3, "7", vU)
    a.valu("v_add_u32", vTw, "s36", vL2)
    a.valu("v_lshl_add_u32", vAW, t3, "8", vTw)
    a.valu("v_lshl_add_u32", vRow, vLane, "5", "s36")
    a.valu("v_lshl_add_u32", t3, vN, "4", "s49")
    a.valu("v_lshl_add_u32", vPA, vG, "2", t3)
    a.valu("v_lshl_add_u32", t3, vN, "4", "s50")
    a.valu("v_lshl_add_u32", vPP, vG, "1", t3)
    a.valu("v_mov_b32", vS, f"{SC_F32:#x}")
    a.valu("v_mov_b32", A2, "0")
    a.valu("v_mov_b32", A2 + 1, "0")
    for reg, row, val in ((A2, 0, SC_BF), (A2, 4, SC_BF << 16), (A2 + 1, 8, SC_BF), (A2 + 1, 12, SC_BF << 16)):
        m = (1 << row) | (1 << (row + 16))
        a.salu(f"s_mov_b32 exec_lo, {m:#x}")
        a.salu(f"s_mov_b32 exec_hi, {m:#x}")
        a.valu("v_mov_b32", reg, f"{val:#x}")
    a.salu("s_mov_b64 exec, -1")
    dma_upto(cfg.get(1, 0))
    a.valu("v_add_f32", wa, wa, wc)
    dma_upto(cfg.get(2, 0))
    a.valu("v_sub_f32", wb, wb, wc)
    a.valu("v_mul_f32", wa, "s37", wa)
    a.valu("v_mul_f32", wd, "s37", wd)
    a.valu("v_mul_f32", wb, "s37", wb)
    a.ds_write("ds_write_b32", vPA, wa, 1, IMG_ACS)
    a.ds_write("ds_write_b32", vPA, wd, 1, IMG_WDS)
    a.valu("v_cvt_pk_bf16_f32", t1, wb, wb)
    a.valu("v_mov_b32", t0, "s42")
    a.valu("v_lshlrev_b32", t3, "16", t1)
    a.valu("v_sub_f32", t3, wb, t3)
    a.valu("v_cvt_pk_bf16_f32", t3, t3, t3)
    a.valu("v_fma_f32", b1v, b1v, "s37", t0)
    a.ds_write("ds_write_b16", vPP, t1, 1, IMG_AP)
    a.ds_write("ds_write_b16", vPP, t3, 1, IMG_AP + 512)
    a.ds_write("ds_write_b32", t2, b1v, 1, IMG_B1)
    a.ds_write("ds_write_b32", t2, w2v, 1, IMG_W2)
    a.ds_write("ds_write_b32", vU, tv, 1, TF_OFF - L_OFF)
    a.ds_write("ds_write_b16_d16_hi", vTw, tv, 1, TR_OFF)
    a.wait_lds_all()
    stamp(1)
    a._emit("s_barrier")
    a.ds_read("ds_read_b128", ACS, 4, vL16, IMG_ACS)
    a.ds_read("ds_read_b128", WDS, 4, vL16, IMG_WDS)
    for j in range(4):
        a.ds_read("ds_read_b128", T[j], 4, vTg, TF_OFF + 64 * j)
    a.ds_read("ds_read_b128", AP, 4, vL16, IMG_AP)
    a.ds_read("ds_read_b128", B1S, 4, vB16, IMG_B1)
    for j in range(4):
        a.ds_read("ds_read_b128", TR[j], 4, vT16, TR_OFF + 32 * j)
    a.ds_read("ds_read_b128", W4, 4, vB16, IMG_W2)
    dma_upto(cfg.get(3, 0))
    a.salu("s_mov_b32 exec_hi, 0x3ffff")
    for j in range(4):
        a.ins("valu", f"v_cmp_lt_u32 s[{48+2*j}:{49+2*j}], s39, v{vM+j}", rd=[vM + j], swr=[f"s{48+2*j}", f"s{49+2*j}"])
    for j in range(4):
        a.valu("v_or_b32", vM + j, vRow, vM + j)
    for j in range(4):
        a.valu("v_mbcnt_lo_u32_b32", rk[j], f"s{48+2*j}", "0")
    for j in range(4):
        a.valu("v_mbcnt_hi_u32_b32", rk[j], f"s{49+2*j}", rk[j])
    for j in range(4):
        a.valu("v_lshl_add_u32", rk[j], rk[j], "2", "s41")
    for j in range(4):
        a.salu(f"s_mov_b64 exec, s[{48+2*j}:{49+2*j}]")
        a.ds_write("ds_write_b32", rk[j], vM + j, 1, 256 * j)
    a.salu("s_mov_b64 exec, -1")
    for j in range(4):
        a.salu(f"s_bcnt1_i32_b64 s{56+j}, s[{48+2*j}:{49+2*j}]")
    a.salu("s_max_u32 s43, s56, s57")
    a.salu("s_max_u32 s48, s58, s59")
    a.salu("s_max_u32 s43, s43, s48")
    dma_upto(cfg.get(4, 0))
    for j in range(4):
        for k in range(4):
            if "M" in args.skip: continue
            a.valu("v_fma_f32", T[j] + k, T[j] + k, WDS + k, ACS + k)
    for j in range(4):
        rd2(GA1 + 2 * j, vE1a, 64 * j, 64 * j + 16)
    for j in range(4):
        a.mfma(Cj[j], AP, TR[j], B1S)
    for j in range(4):
        rd2(GA3 + 2 * j, vE3a, 64 * j, 64 * j + 4)
    for h in range(2):
        a.ds_read("ds_read_b32", EM + h, 1, vEMa, 512 * h)
    for j in range(4):
        a.valu("v_cvt_pk_bf16_f32", Aj[j], T[j], T[j] + 1)
        a.valu("v_cvt_pk_bf16_f32", Aj[j] + 1, T[j] + 2, T[j] + 3)
    for t in range(8):
        gadd(GA1 + t, vG8)

    dma_upto(7)

import copy
def parse(c): return {int(x.split(":")[0]): int(x.split(":")[1]) for x in c.split(",") if x}
if args.early > 0:
    a.salu(f"s_cmp_ge_u32 s52, {args.early}")
    a.salu("s_cbranch_scc1 L_late")
    snap = copy.deepcopy({k: v for k, v in a.__dict__.items() if k != "lines"})
    prologue(parse(args.cfga))
    stA = ([t for t, d in a.vm_q], copy.deepcopy(a.lds_q))
    a.salu("s_branch L_join")
    a.raw("L_late:")
    a.__dict__.update(snap); issued[0] = 0
    prologue(parse(args.cfgb))
    stB = ([t for t, d in a.vm_q], copy.deepcopy(a.lds_q))
    assert stA == stB, (stA, stB)
    a.raw("L_join:")
else:
    prologue(parse(args.cfgb))

NEED = {0: 1, 1: 3, 2: 4, 3: 6}
def L(j):
    dma_upto(NEED[j] + 1)
    a.wait_vm_for(tag=f"h{NEED[j]}")
    dma_upto(NEED[j] + 1 + DEPTH)
    for i in range(2):
        a.ds_read("ds_read_b64", B1[j % 2][i], 2, GA1 + 2 * j + i, 1600 * j)
def M(j):
    for i in range(2):
        a.mfma16(D1[j % 2][i], Aj[j], B1[j % 2][i], Cj[j])
def S(dd, dst, mid=None):
    regs = [d + r for d in dd for r in range(4)]
    if "S" in args.skip:
        if mid: mid()
        a.valu("v_cvt_pk_bf16_f32", dst, dd[0] + 1, dd[1] + 1)
        return
    if "E" in args.skip:
        for r in regs:
            a.ins("trans", f"v_exp_f32_e64 v{r}, v{r} clamp", rd=[r], wr=[r])
        if mid: mid()
        a.valu("v_cvt_pk_bf16_f32", dst, dd[0] + 1, dd[1] + 1)
        return
    for r in regs:
        a.ins("trans", f"v_exp_f32_e64 v{r}, v{r} clamp", rd=[r], wr=[r])
    if mid: mid()
    for r in regs: a.valu("v_add_f32", r, vS, r)
    def both(f):
        for i, d in enumerate(dd): f(d, tn[i])
    both(lambda d, t: a.valu("v_mul_f32", t, W4, d + 1))
    both(lambda d, t: a.valu("v_mul_f32", t + 1, W4 + 2, d + 3))
    both(lambda d, t: a.valu("v_fma_f32", t, W4 + 1, d, t))
    both(lambda d, t: a.valu("v_fma_f32", t + 1, W4 + 3, d + 2, t + 1))
    both(lambda d, t: a.valu("v_mul_f32", d, d, d + 1))
    both(lambda d, t: a.valu("v_mul_f32", d + 2, d + 2, d + 3))
    both(lambda d, t: a.valu("v_mul_f32", d + 3, d, d + 2))
    both(lambda d, t: a.valu("v_mul_f32", d + 1, t, d + 2))
    both(lambda d, t: a.valu("v_rcp_f32", d + 3, d + 3, kind="trans"))
    both(lambda d, t: a.valu("v_fma_f32", d + 1, t + 1, d, d + 1))
    both(lambda d, t: a.valu("v_mul_f32", d + 1, d + 1, d + 3))
    a.valu("v_cvt_pk_bf16_f32", dst, dd[0] + 1, dd[1] + 1)
def Sj(j, mid=None):
    S(D1[j % 2], P[j // 2] + (j % 2), mid)
def W(h):
    a.mfma16(D2, A2, P[h], C2)
def T3(h):
    for i in range(2):
        j = 2 * h + i
        for u in range(2):
            a.ds_read("ds_read_b64_tr_b16", A3[i] + 2 * u, 2, GA3 + 2 * j + u, 1600 * j)
def X(h):
    a.valu("v_mul_f32", sc, D2, EM + h)
    a.valu("v_cvt_pk_bf16_f32", sc, sc, sc)
    a.ds_write("ds_write_b16", vAW, sc, 1, SB_OFF + 640 * h)
    for i in range(2):
        a.ds_read("ds_read_b128", B3[i], 4, vAB3, SB_OFF + 256 * (2 * h + i))
def Y(h):
    for i in range(2):
        a.mfma(D3, A3[i], B3[i], "0" if (h, i) == (0, 0) else D3)
def G3():
    for t in range(8):
        gadd(GA3 + t, vC8)
    for h in range(2):
        a.valu("v_and_b32", EM + h, "0xffff0000", EM + h)

def dbg(name, regs):
    if args.dbg != name: return
    a.raw("    s_waitcnt vmcnt(0) lgkmcnt(0)\n    s_nop 7\n    s_nop 7\n    s_mov_b64 exec, -1")
    a.raw("    s_load_dwordx2 s[64:65], s[0:1], 72\n    v_lshlrev_b32 v126, 2, v0\n    s_lshl_b32 s66, s2, 14\n    v_add_u32 v126, s66, v126\n    s_waitcnt lgkmcnt(0)")
    for i, r in enumerate(regs):
        a.raw(f"    global_store_dword v126, v{r}, s[64:65] offset:{1024*(i%4)}")
        if i % 4 == 3: a.raw("    v_add_u32 v126, 4096, v126")
    a.raw("    s_endpgm")
stamp()
L(0)
G3()
dbg("ga", [GA1 + i for i in range(8)] + [GA3 + i for i in range(6)] + [EM, EM + 1])
M(0)
Sj(0, mid=lambda: L(1))
M(1)
stamp()
Sj(1, mid=lambda: (L(2), T3(0)))
M(2)
W(0)
stamp()
Sj(2, mid=lambda: X(0))
Y(0)
dbg("y0", [D2, P[0], P[0] + 1, sc] + [B3[0] + i for i in range(4)] + [D3 + i for i in range(4)] + [A3[0] + i for i in range(4)])
L(3)
T3(1)
M(3)
stamp()
Sj(3)
W(1)
X(1)
Y(1)
a.salu(f"s_cmp_gt_u32 s43, {args.forceslow}")
a.salu("s_cbranch_scc1 L_slow")
a.raw("L_back:")
a.valu("v_cvt_pk_bf16_f32", o01, D3, D3 + 1)
a.valu("v_cvt_pk_bf16_f32", o01 + 1, D3 + 2, D3 + 3)
a.salu("s_mov_b32 exec_lo, 0x000f000f")
a.salu("s_mov_b32 exec_hi, 0x000f000f")
a.ins("vmemst", f"buffer_store_dwordx2 v[{o01}:{o01+1}], v{vOut}, s[28:31], s35 offen", rd=[o01, o01 + 1, vOut])
if TS:
    a.raw("""    s_waitcnt vmcnt(0)
    s_memrealtime s[62:63]
    s_memtime s[92:93]
    s_lshl_b32 s66, s32, 4
    v_mov_b32 v1, s66
    s_waitcnt lgkmcnt(0)
    v_mov_b32 v4, s60
    s_sub_u32 s92, s92, s90
    v_mov_b32 v5, s92
    v_mov_b32 v6, s62
    v_mov_b32 v7, 0
    s_mov_b64 exec, 1
    global_store_dwordx4 v1, v[4:7], s[64:65]""")
    if TS >= 2:
        a.raw("    s_lshl_b32 s66, s32, 5\n    s_add_u32 s66, s66, 0x100000\n    v_mov_b32 v1, s66")
        st = [60] + stamps + [62]
        assert len(st) == 8
        for i, r in enumerate(st):
            a.raw(f"    v_mov_b32 v{8+i}, s{r}")
        a.raw("    global_store_dwordx4 v1, v[8:11], s[64:65]\n    global_store_dwordx4 v1, v[12:15], s[64:65] offset:16")
a.raw("L_done:")
a.raw("    s_endpgm")
main_stat = dict(a.stat); main_nops = a.nops
a.raw("L_slow:")
a.lds_q = []; a.vm_q = []
a.nop(16)
a.valu("v_mov_b32", P[0] + 1, "0")
for j in range(4):
    a.salu(f"s_cmp_le_u32 s{56+j}, {args.forceslow}")
    a.salu(f"s_cbranch_scc1 L_sk{j}")
    rd2(GA1, vE1a, 64 * j + 32, 64 * j + 48)
    rd2(GA3, vE3a, 64 * j + 32, 64 * j + 36)
    a.ds_read("ds_read_b32", EM, 1, vEMa, 256 * j + 128)
    for t in range(2): gadd(GA1 + t, vG8)
    for t in range(2): gadd(GA3 + t, vC8)
    a.valu("v_and_b32", EM, "0xffff0000", EM)
    for i in range(2):
        a.ds_read("ds_read_b64", B1[0][i], 2, GA1 + i, 1600 * j)
    for u in range(2):
        a.ds_read("ds_read_b64_tr_b16", A3[0] + 2 * u, 2, GA3 + u, 1600 * j)
    for i in range(2):
        a.mfma16(D1[0][i], Aj[j], B1[0][i], Cj[j])
    S(D1[0], P[0])
    a.mfma16(D2, A2, P[0], C2)
    a.valu("v_mul_f32", sc, D2, EM)
    a.valu("v_cvt_pk_bf16_f32", sc, sc, sc)
    a.salu("s_mov_b32 exec_hi, 0")
    a.ds_write("ds_write_b16", vAW, sc, 1, SB_OFF + 320 * j)
    a.salu("s_mov_b32 exec_hi, -1")
    a.ds_read("ds_read_b128", B3[0], 4, vAB3, SB_OFF + 256 * j)
    a.mfma(D3, A3[0], B3[0], D3)
    a.nop(16)
    a.raw(f"L_sk{j}:")
a.raw("    s_branch L_back")
if args.dbg: NVGPR = 128
acc = (NVGPR + 3) // 4 * 4
a.raw(f""".section .rodata,"a"
.p2align 6
.amdhsa_kernel {NAME}
  .amdhsa_next_free_vgpr {NVGPR}
  .amdhsa_next_free_sgpr {96 if (TS or args.dbg) else 64}
  .amdhsa_accum_offset {acc}
  .amdhsa_group_segment_fixed_size 0
  .amdhsa_kernarg_size 80
  .amdhsa_user_sgpr_count 2
  .amdhsa_user_sgpr_kernarg_segment_ptr 1
  .amdhsa_system_sgpr_workgroup_id_x 1
.end_amdhsa_kernel""")
sys.stdout.write(a.text())
sys.stderr.write(f"vgpr {NVGPR} (D1 {maxD1} E1 {maxE1} D2 {maxD2} E2 {maxE2}) nops {main_nops} stat {main_stat} lds {LDS}\n")
```

```python
import sys, argparse, copy
from asmlib import Asm
ap = argparse.ArgumentParser()
ap.add_argument("--ts", type=int, default=0)
ap.add_argument("--forceslow", type=int, default=32)
ap.add_argument("--early", type=int, default=1)
ap.add_argument("--cfga", type=str, default="1:7")
ap.add_argument("--cfgb", type=str, default="4:7")
ap.add_argument("--skip", type=str, default="")
ap.add_argument("--lo", type=int, default=0)
ap.add_argument("--wpw", type=int, default=4)
ap.add_argument("--mdma", type=int, default=0)
ap.add_argument("--pst", type=int, default=0)
ap.add_argument("--pk", type=int, default=1)
ap.add_argument("--prio", type=str, default="")
ap.add_argument("--stflags", type=str, default="")
args = ap.parse_args()
TS = args.ts
WPW = args.wpw

NAME = "standalone__sequential_behavior_din__recsys_kernel"
NWG = 4096 // WPW
S_HEX = "0xbfb8aa3b"
KSH = 24
SC_F32 = (127 - KSH) << 23
SC_BF = (127 - KSH) << 7
IMG_ACS, IMG_WDS, IMG_AP, IMG_B1, IMG_W2, IMG_B2, IMG_APL = 0, 1024, 2048, 3072, 3136, 3200, 3264
WAVE0 = 3264 + (1024 if args.lo else 0)
H_OFF, L_OFF, SB_OFF, TF_OFF, MK_OFF, WSZ = 0, 6400, 7424, 7680, 7936, (8448 if args.mdma else 7936)
LDS = WAVE0 + WPW * WSZ

a = Asm()
hdr = open("standalone__sequential_behavior_din__recsys.s.ref").read().split("; Override")[0]
a.raw(hdr.rstrip())
a.raw(f"; @launch grid=({NWG},1,1) block=({64*WPW},1,1) lds={LDS}")
a.raw('.amdgcn_target "amdgcn-amd-amdhsa--gfx950"')
a.raw(".text")
a.raw(f".globl {NAME}")
a.raw(".p2align 8")
a.raw(f".type {NAME},@function")
a.raw(f"{NAME}:")

nv = [1]
def V(n=1, al=None):
    al = al or (2 if n > 1 else 1)
    while nv[0] % al: nv[0] += 1
    r = nv[0]; nv[0] += n
    return r
vG8 = V(); vC8 = V(); vE1a = V(); vE3a = V(); vEMa = V(); vAW = V(); vAB3 = V(); vOut = V(); vL16 = V()
W4 = V(4); A2 = V(2); C2 = V(4); vS = C2 + 1
Aj = [V(2) for _ in range(4)]
Cj = [V(4) for _ in range(4)]
D3 = [V(4), V(4), None, None]
APL = D3[0]
base_tmp = nv[0]
ACS = V(4); WDS = V(4); AP = V(4); B1S = V(4)
T = [V(4) for _ in range(4)]; TM = [V(4) for _ in range(4)]
maxD1 = nv[0]
nv[0] = base_tmp
B1 = [[V(2), V(2)] for _ in range(2)]
D1 = [[V(4), V(4)] for _ in range(2)]
A3 = [V(4) for _ in range(2)]
B3 = V(4); D2 = V(4)
P = [V(2), V(2)]
tn = [V(2), V(2)]
maxE1 = nv[0]
nv[0] = max(maxD1, maxE1)
base2 = nv[0]
wa = V(); wb = V(); wc = V(); wd = V()
b1v = V(); w2v = V(); tv = V(); b2v = D3[1]
vM = V(4)
vLane = V(); vL2 = V(); vL2m = V(); vT2 = V(); vN = V(); vG = V(); t0 = V(); t1 = V(); t2 = V(); t3 = V()
vPA = V(); vB16 = V(); vTg = V(); vU = V(); vRow = V(); vInv = V()
maxD2 = nv[0]
nv[0] = base2
GA1 = V(8); GA3 = V(8); EM = V(2); sc = V(); o01 = V(2)
D3[2] = GA1 + 4; D3[3] = GA3 + 4
maxE2 = nv[0]
NVGPR = max(maxD2, maxE2)
rk = [wa, wb, wc, wd]

PR = {x.split(":")[0]: int(x.split(":")[1]) for x in args.prio.split(",") if x}
def prio(k):
    if k in PR: a.salu(f"s_setprio {PR[k]}")
stamps = []
def pstamp(idx):
    if args.pst: stamp(idx, True)
def stamp(idx=None, force=False):
    if args.pst and not force and stamps: return
    if TS >= 2:
        r = 68 + 2 * (len(stamps) if idx is None else idx)
        a.salu(f"s_memrealtime s[{r}:{r+1}]")
        if r not in stamps: stamps.append(r)
a.salu(f"s_cmp_ge_u32 s2, {NWG}")
a.salu("s_cbranch_scc1 L_done")
if TS:
    a.salu("s_memrealtime s[60:61]")
    a.salu("s_memtime s[90:91]")
    a.salu("s_load_dwordx2 s[64:65], s[0:1], 72")
a.salu("s_load_dwordx16 s[4:19], s[0:1], 0")
if args.early: a.salu("s_getreg_b32 s52, hwreg(HW_REG_HW_ID, 0, 4)")
prio("a")
a.valu("v_lshrrev_b32", t0, "6", 0)
a.valu("v_and_b32", vLane, "63", 0)
a.ins("rfl", f"v_readfirstlane_b32 s3, v{t0}", rd=[t0], swr=["s3"])
a.valu("v_mov_b32", t3, "0")
a.valu("v_add_u32", vT2, 0, 0)
a.valu("v_add_u32", vL2, vLane, vLane)
a.valu("v_add_u32", vL2m, vLane, vLane)
a.valu("v_lshlrev_b32", vL16, "4", vLane)
a.valu("v_and_b32", vN, "15", vLane)
a.valu("v_lshrrev_b32", vG, "4", vLane)
a.valu("v_add_u32", t1, vN, vN)
a.salu(f"s_mul_i32 s36, s3, {WSZ}")
a.salu(f"s_add_u32 s36, s36, {WAVE0}")
a.salu(f"s_mul_i32 s32, s2, {WPW}")
a.salu("s_add_u32 s32, s32, s3")
a.salu("s_mul_i32 s33, s32, 6400")
a.salu("s_mul_i32 s34, s32, 400")
a.salu("s_lshl_b32 s35, s32, 7")
a.salu(f"s_add_u32 s41, s36, {L_OFF}")
a.salu(f"s_mov_b32 s37, {S_HEX}")
a.salu("s_add_u32 s38, s33, 4096")
a.salu("s_mov_b32 s22, %d" % (16384 * 1600))
a.salu("s_mov_b32 s23, 0x20000")
a.salu("s_mov_b32 s26, %d" % (16384 * 100))
a.salu("s_mov_b32 s27, 0x20000")
a.salu("s_mov_b32 s30, %d" % (16384 * 32))
a.salu("s_mov_b32 s31, 0x20000")
a.salu("s_mov_b32 s46, %d" % (16384 * 32))
a.salu("s_mov_b32 s47, 0x20000")
a.salu("s_mov_b32 m0, s36", swr=["m0"])
a.valu("v_lshlrev_b32", vRow, "5", vLane)
a.salu("s_mov_b32 exec_lo, 0")
a.salu("s_mov_b32 exec_hi, 0xfffc0000")
a.valu("v_mov_b32", vL2m, "0x7ff00000")
a.valu("v_mov_b32", vRow, str(49 * 32))
a.salu("s_mov_b64 exec, -1")
a._emit("s_waitcnt lgkmcnt(0)")
stamp()
a.salu("s_cmp_lg_u32 s3, 0")
a.salu("s_cbranch_scc1 L_nb")
a.ins("vmem", f"global_load_short_d16_hi v{b2v}, v{t3}, s[16:17]", rd=[t3], wr=[b2v])
a.ins("vmem", f"global_load_short_d16_hi v{b1v}, v{t1}, s[12:13]", rd=[t1], wr=[b1v])
a.ins("vmem", f"global_load_short_d16_hi v{w2v}, v{t1}, s[14:15]", rd=[t1], wr=[w2v])
a.raw("L_nb:")
if WPW > 4:
    a.salu("s_cmp_ge_u32 s3, 4")
    a.salu("s_cbranch_scc1 L_nw")
for i, r in enumerate((wa, wb, wc, wd)):
    a.ins("vmem", f"global_load_short_d16_hi v{r}, v{vT2}, s[10:11]" + (f" offset:{512*i}" if i else ""), rd=[vT2], wr=[r])
if WPW > 4: a.raw("L_nw:")
a.salu("s_mov_b32 s44, s4")
a.salu("s_and_b32 s45, s5, 0xffff")
a.ins("vmem", f"buffer_load_short_d16_hi v{tv}, v{vL2}, s[44:47], s35 offen", rd=[vL2], wr=[tv])
a.salu("s_mov_b32 s24, s8")
a.salu("s_and_b32 s25, s9, 0xffff")
if args.mdma:
    a.salu(f"s_add_u32 m0, s36, {MK_OFF}", swr=["m0"])
    a.salu("s_mov_b64 exec, 0x1ffffff")
    a.ins("dma", f"buffer_load_dwordx4 v{vL16}, s[24:27], s34 offen lds", rd=[vL16], tag="mk")
    a.salu("s_mov_b64 exec, -1")
    a.salu("s_mov_b32 m0, s36", swr=["m0"])
else:
    for j in range(4):
        a.ins("vmem", f"buffer_load_short_d16_hi v{vM+j}, v{vL2m}, s[24:27], s34 offen" + (f" offset:{100*j}" if j else ""), rd=[vL2m], wr=[vM + j])
a.salu("s_mov_b32 s20, s6")
a.salu("s_and_b32 s21, s7, 0xffff")
def dma(k):
    if "D" in args.skip and k > 0:
        a._emit("s_nop 0"); return
    if k == 4:
        a.salu("s_add_u32 m0, s36, 4096", swr=["m0"])
    if k == 6:
        a.salu("s_mov_b64 exec, 0xffff")
    so = "s33" if k < 4 else "s38"
    off = (k % 4) * 1024
    a.ins("dma", f"buffer_load_dwordx4 v{vL16}, s[20:23], {so} offen" + (f" offset:{off}" if off else "") + " lds", rd=[vL16], tag=f"h{k}")
    if k == 6:
        a.salu("s_mov_b64 exec, -1")
issued = [0]
def dma_upto(n):
    while issued[0] < min(n, 7):
        dma(issued[0]); issued[0] += 1
def gadd(r, off):
    a.ins("valu", f"v_add_u32_sdwa v{r}, v{r}, v{off} dst_sel:DWORD dst_unused:UNUSED_PAD src0_sel:WORD_0 src1_sel:DWORD", rd=[r, off], wr=[r])

def pk(op, dst, srcs, mod=""):
    rd = [r + k for r in srcs for k in range(2)]
    a.ins("valu", f"{op} v[{dst}:{dst+1}], " + ", ".join(f"v[{r}:{r+1}]" for r in srcs) + (" " + mod if mod else ""), rd=rd, wr=[dst, dst + 1])

lab = [0]
def prologue(cfg):
    pstamp(1)
    dma_upto(cfg.get(0, 0))
    a.salu("s_mov_b32 s28, s18")
    a.salu("s_and_b32 s29, s19, 0xffff")
    a.salu("s_mov_b32 s39, 0xffff")
    a.salu("s_lshl_b32 s49, s3, 8")
    a.valu("v_lshlrev_b32", vG8, "3", vG)
    a.valu("v_lshl_add_u32", vOut, vN, "5", vG8)
    a.valu("v_add_u32", vB16, vG8, vG8)
    a.valu("v_add_u32", vTg, "s36", vB16)
    a.valu("v_add_u32", vG8, "s36", vG8)
    a.valu("v_and_b32", t3, "3", vLane)
    a.valu("v_lshl_add_u32", vC8, t3, "3", "s36")
    a.valu("v_lshl_add_u32", vAB3, t3, "6", vTg)
    a.valu("v_lshl_add_u32", vAW, t3, "1", "s36")
    a.valu("v_lshl_add_u32", vE1a, vN, "3", "s41")
    a.valu("v_and_b32", t3, "0x78", vL2)
    a.valu("v_add_u32", vE3a, "s41", t3)
    a.valu("v_and_b32", t0, "1", vG)
    a.valu("v_lshrrev_b32", t3, "5", vLane)
    a.valu("v_lshl_add_u32", vEMa, t0, "2", vE1a)
    a.valu("v_lshl_add_u32", vEMa, t3, "8", vEMa)
    a.valu("v_lshl_add_u32", vAW, t0, "3", vAW)
    a.valu("v_lshl_add_u32", vAW, t3, "6", vAW)
    a.valu("v_and_b32", t3, "12", vLane)
    a.valu("v_lshl_add_u32", vAW, t3, "2", vAW)
    a.valu("v_lshl_add_u32", vU, vLane, "2", "s36")
    a.valu("v_sub_u32", vInv, "63", vLane)
    a.valu("v_mov_b32", vS, f"{SC_F32:#x}")
    a.valu("v_mov_b32", A2, "0")
    a.valu("v_mov_b32", A2 + 1, "0")
    for reg, row, val in ((A2, 0, SC_BF), (A2, 4, SC_BF << 16), (A2 + 1, 8, SC_BF), (A2 + 1, 12, SC_BF << 16)):
        m = (1 << row) | (1 << (row + 16))
        a.salu(f"s_mov_b32 exec_lo, {m:#x}")
        a.salu(f"s_mov_b32 exec_hi, {m:#x}")
        a.valu("v_mov_b32", reg, f"{val:#x}")
    a.salu("s_mov_b64 exec, -1")
    dma_upto(cfg.get(1, 0))
    pstamp(2)
    lab[0] += 1
    if WPW > 4:
        a.salu("s_cmp_ge_u32 s3, 4")
        a.salu(f"s_cbranch_scc1 L_np{lab[0]}")
    a.valu("v_lshl_add_u32", t3, vN, "4", "s49")
    a.valu("v_lshl_add_u32", vPA, vG, "2", t3)
    a.valu("v_add_f32", wa, wa, wc)
    pstamp(3)
    a.valu("v_sub_f32", wb, wb, wc)
    a.valu("v_mul_f32", wa, "s37", wa)
    a.valu("v_mul_f32", wb, "s37", wb)
    a.valu("v_mul_f32", wd, "s37", wd)
    a.ds_write("ds_write_b32", vPA, wa, 1, IMG_ACS)
    a.valu("v_cvt_pk_bf16_f32", t1, wb, wb)
    a.ds_write("ds_write_b32", vPA, wd, 1, IMG_WDS)
    a.ds_write("ds_write_b32", vPA, t1, 1, IMG_AP)
    if args.lo:
        a.valu("v_and_b32", t3, "0xffff0000", t1)
        a.valu("v_sub_f32", t3, wb, t3)
        a.valu("v_cvt_pk_bf16_f32", t3, t3, t3)
        a.ds_write("ds_write_b32", vPA, t3, 1, IMG_APL)
    a.salu("s_cmp_lg_u32 s3, 0")
    a.salu(f"s_cbranch_scc1 L_np{lab[0]}")
    a.valu("v_mov_b32", t0, "0xc1c00000")
    a.valu("v_lshlrev_b32", t2, "2", vN)
    a.valu("v_fma_f32", b1v, b1v, "s37", t0)
    a.salu("s_mov_b64 exec, 0xffff")
    a.ds_write("ds_write_b32", t2, b1v, 1, IMG_B1)
    a.ds_write("ds_write_b32", t2, w2v, 1, IMG_W2)
    a.ds_write("ds_write_b32", t2, b2v, 1, IMG_B2)
    a.salu("s_mov_b64 exec, -1")
    a.raw(f"L_np{lab[0]}:")
    dma_upto(cfg.get(2, 0))
    a.ds_write("ds_write_b32", vU, tv, 1, TF_OFF)
    if args.mdma:
        a.wait_vm_for(tag="mk")
        for j in range(4):
            a.ds_read("ds_read_u16_d16_hi", vM + j, 1, vL2m, MK_OFF + 100 * j)
        a._emit("s_waitcnt lgkmcnt(4)"); a.lds_q = a.lds_q[-4:]
    else:
        a.wait_lds_all()
    stamp(1)
    pstamp(4)
    a._emit("s_barrier")
    pstamp(5)
    prio("b")
    for j in range(2):
        a.ds_read("ds_read_b128", T[j], 4, vTg, TF_OFF + 64 * j)
    a.ds_read("ds_read_b128", ACS, 4, vL16, IMG_ACS)
    a.ds_read("ds_read_b128", WDS, 4, vL16, IMG_WDS)
    for j in range(2, 4):
        a.ds_read("ds_read_b128", T[j], 4, vTg, TF_OFF + 64 * j)
    a.ds_read("ds_read_b128", AP, 4, vL16, IMG_AP)
    a.ds_read("ds_read_b128", B1S, 4, vB16, IMG_B1)
    if args.lo: a.ds_read("ds_read_b128", APL, 4, vL16, IMG_APL)
    a.ds_read("ds_read_b128", W4, 4, vB16, IMG_W2)
    a.ds_read("ds_read_b32", C2, 1, vB16, IMG_B2)
    dma_upto(cfg.get(3, 0))
    for j in range(4):
        a.ins("valu", f"v_cmp_lt_u32 s[{48+2*j}:{49+2*j}], s39, v{vM+j}", rd=[vM + j], swr=[f"s{48+2*j}", f"s{49+2*j}"])
    for j in range(4):
        a.valu("v_or_b32", vM + j, vRow, vM + j)
    for j in range(4):
        a.valu("v_cndmask_b32", rk[j], vInv, "0", f"s[{48+2*j}:{49+2*j}]")
    for j in range(4):
        a.valu("v_mbcnt_lo_u32_b32", rk[j], f"s{48+2*j}", rk[j])
    for j in range(4):
        a.valu("v_mbcnt_hi_u32_b32", rk[j], f"s{49+2*j}", rk[j])
    for j in range(4):
        a.valu("v_lshl_add_u32", rk[j], rk[j], "2", "s41")
        a.ds_write("ds_write_b32", rk[j], vM + j, 1, 256 * j)
    for j in range(4):
        a.salu(f"s_bcnt1_i32_b64 s{56+j}, s[{48+2*j}:{49+2*j}]")
    a.salu("s_max_u32 s43, s56, s57")
    a.salu("s_max_u32 s48, s58, s59")
    a.salu("s_max_u32 s43, s43, s48")
    dma_upto(cfg.get(4, 0))
    for j in range(4):
        a.ds_read("ds_read_b64", GA1 + 2 * j, 2, vE1a, 256 * j)
    for j in range(4):
        if args.pk:
            for k in (0, 2): pk("v_pk_fma_f32", TM[j] + k, [T[j] + k, WDS + k, ACS + k])
            continue
        for k in range(4):
            a.valu("v_fma_f32", TM[j] + k, T[j] + k, WDS + k, ACS + k)
    for j in range(4):
        a.ds_read("ds_read_b64", GA3 + 2 * j, 2, vE3a, 256 * j)
    for h in range(2):
        a.ds_read("ds_read_b32", EM + h, 1, vEMa, 512 * h)
    for j in range(4):
        if "C" in args.skip: continue
        a.mfma(Cj[j], AP, T[j], B1S)
    if args.lo:
        for j in range(4):
            a.mfma(Cj[j], APL, T[j], Cj[j])
    for j in range(4):
        a.valu("v_cvt_pk_bf16_f32", Aj[j], TM[j], TM[j] + 1)
        a.valu("v_cvt_pk_bf16_f32", Aj[j] + 1, TM[j] + 2, TM[j] + 3)
    for t in range(8):
        gadd(GA1 + t, vG8)
    dma_upto(7)

def parse(c): return {int(x.split(":")[0]): int(x.split(":")[1]) for x in c.split(",") if x}
if args.early > 0:
    a.salu(f"s_cmp_ge_u32 s52, {args.early}")
    a.salu("s_cbranch_scc1 L_late")
    snap = copy.deepcopy({k: v for k, v in a.__dict__.items() if k != "lines"})
    prologue(parse(args.cfga))
    stA = ([t for t, d in a.vm_q], copy.deepcopy(a.lds_q))
    a.salu("s_branch L_join")
    a.raw("L_late:")
    a.__dict__.update(snap); issued[0] = 0
    prologue(parse(args.cfgb))
    stB = ([t for t, d in a.vm_q], copy.deepcopy(a.lds_q))
    assert stA == stB, (stA, stB)
    a.raw("L_join:")
else:
    prologue(parse(args.cfgb))

NEED = {0: 1, 1: 3, 2: 4, 3: 6}
def L(j):
    a.wait_vm_for(tag=f"h{NEED[j]}")
    for i in range(2):
        a.ds_read("ds_read_b64", B1[j % 2][i], 2, GA1 + 2 * j + i, 1600 * j)
def M(j):
    for i in range(2):
        a.mfma16(D1[j % 2][i], Aj[j], B1[j % 2][i], Cj[j])
def S(dd, dst, mid=None):
    regs = [d + r for d in dd for r in range(4)]
    if "S" in args.skip:
        if mid: mid()
        a.valu("v_cvt_pk_bf16_f32", dst, dd[0] + 1, dd[1] + 1)
        return
    for r in regs:
        a.ins("trans", f"v_exp_f32_e64 v{r}, v{r} clamp", rd=[r], wr=[r])
    if mid: mid()
    def both(f):
        for i, d in enumerate(dd): f(d, tn[i])
    if args.pk:
        u = tn[0]; assert tn[1] == u + 2
        both(lambda d, t: pk("v_pk_add_f32", d, [d, C2], "op_sel:[0,1] op_sel_hi:[1,1]"))
        both(lambda d, t: pk("v_pk_add_f32", d + 2, [d + 2, C2], "op_sel:[0,1] op_sel_hi:[1,1]"))
        both(lambda d, t: pk("v_pk_mul_f32", t, [W4, d + 2]))
        both(lambda d, t: pk("v_pk_fma_f32", t, [W4 + 2, d, t]))
        both(lambda d, t: pk("v_pk_mul_f32", d, [d, d + 2]))
        both(lambda d, t: pk("v_pk_mul_f32", t, [t, d], "op_sel:[0,1] op_sel_hi:[1,0]"))
        e = dd[0] + 2
        f = dd[1] + 2
        for i, d in enumerate(dd): a.valu("v_mul_f32", e + i, d, d + 1)
        for i, d in enumerate(dd): a.valu("v_add_f32", f + i, tn[i], tn[i] + 1)
        for i in range(2): a.valu("v_rcp_f32", e + i, e + i, kind="trans")
        pk("v_pk_mul_f32", f, [f, e])
        a.valu("v_cvt_pk_bf16_f32", dst, f, f + 1)
        return
    for r in regs: a.valu("v_add_f32", r, vS, r)
    both(lambda d, t: a.valu("v_mul_f32", t, W4, d + 1))
    both(lambda d, t: a.valu("v_mul_f32", t + 1, W4 + 2, d + 3))
    both(lambda d, t: a.valu("v_fma_f32", t, W4 + 1, d, t))
    both(lambda d, t: a.valu("v_fma_f32", t + 1, W4 + 3, d + 2, t + 1))
    both(lambda d, t: a.valu("v_mul_f32", d, d, d + 1))
    both(lambda d, t: a.valu("v_mul_f32", d + 2, d + 2, d + 3))
    both(lambda d, t: a.valu("v_mul_f32", d + 3, d, d + 2))
    both(lambda d, t: a.valu("v_mul_f32", d + 1, t, d + 2))
    both(lambda d, t: a.valu("v_rcp_f32", d + 3, d + 3, kind="trans"))
    both(lambda d, t: a.valu("v_fma_f32", d + 1, t + 1, d, d + 1))
    both(lambda d, t: a.valu("v_mul_f32", d + 1, d + 1, d + 3))
    a.valu("v_cvt_pk_bf16_f32", dst, dd[0] + 1, dd[1] + 1)
def Sj(j, mid=None):
    if "H" in args.skip:
        for q in range(10): a.valu("v_lshlrev_b32", o01, "1", o01)
    if "F" in args.skip:
        for q in range(10): a.valu("v_add_u32", o01 + (q & 1), vL16, o01 + (q & 1))
    S(D1[j % 2], P[j // 2] + (j % 2), mid)
def W(h):
    a.mfma16(D2, A2, P[h], C2)
def T3(h):
    for i in range(2):
        j = 2 * h + i
        for u in range(2):
            a.ds_read("ds_read_b64_tr_b16", A3[i] + 2 * u, 2, GA3 + 2 * j + u, 1600 * j)
def X(h):
    a.valu("v_mul_f32", sc, D2, EM + h)
    a.valu("v_cvt_pk_bf16_f32", sc, sc, sc)
    a.ds_write("ds_write_b16", vAW, sc, 1, SB_OFF + 128 * h)
    a.ds_read("ds_read_b128", B3, 4, vAB3, SB_OFF)
def Y(h):
    for i in range(2):
        a.mfma(D3[2 * h + i], A3[i], B3, "0")
def G3():
    if "G" in args.skip: return
    for t in range(8):
        gadd(GA3 + t, vC8)
    for h in range(2):
        a.valu("v_and_b32", EM + h, "0xffff0000", EM + h)

stamp()
prio("c")
L(0)
G3()
M(0)
Sj(0, mid=lambda: L(1))
M(1)
stamp()
prio("d")
Sj(1, mid=lambda: (L(2), T3(0)))
M(2)
W(0)
stamp()
prio("e")
Sj(2, mid=lambda: X(0))
Y(0)
L(3)
T3(1)
M(3)
stamp()
prio("f")
Sj(3)
W(1)
X(1)
Y(1)
assert not a.lds_q
a.salu(f"s_cmp_gt_u32 s43, {args.forceslow}")
a.salu("s_cbranch_scc1 L_slow")
a.raw("L_back:")
for j in range(4):
    m = (1 << j) | (1 << (j + 16))
    a.salu(f"s_mov_b32 exec_lo, {m:#x}")
    a.salu(f"s_mov_b32 exec_hi, {m:#x}")
    a.valu("v_cvt_pk_bf16_f32", o01, D3[j], D3[j] + 1)
    a.valu("v_cvt_pk_bf16_f32", o01 + 1, D3[j] + 2, D3[j] + 3)
a.salu("s_mov_b32 exec_lo, 0x000f000f")
a.salu("s_mov_b32 exec_hi, 0x000f000f")
a.ins("vmemst", f"buffer_store_dwordx2 v[{o01}:{o01+1}], v{vOut}, s[28:31], s35 offen {args.stflags}", rd=[o01, o01 + 1, vOut])
if TS:
    a.raw("""    s_waitcnt vmcnt(0)
    s_memrealtime s[62:63]
    s_memtime s[92:93]
    s_lshl_b32 s66, s32, 4
    v_mov_b32 v1, s66
    s_waitcnt lgkmcnt(0)
    v_mov_b32 v4, s60
    s_sub_u32 s92, s92, s90
    v_mov_b32 v5, s92
    v_mov_b32 v6, s62
    v_mov_b32 v7, 0
    s_mov_b64 exec, 1
    global_store_dwordx4 v1, v[4:7], s[64:65]""")
    if TS >= 2:
        a.raw("    s_lshl_b32 s66, s32, 5\n    s_add_u32 s66, s66, 0x100000\n    v_mov_b32 v1, s66")
        st = [60] + stamps + [62]
        assert len(st) == 8
        for i, r in enumerate(st):
            a.raw(f"    v_mov_b32 v{8+i}, s{r}")
        a.raw("    global_store_dwordx4 v1, v[8:11], s[64:65]\n    global_store_dwordx4 v1, v[12:15], s[64:65] offset:16")
a.raw("L_done:")
a.raw("    s_endpgm")
main_stat = dict(a.stat); main_nops = a.nops
a.raw("L_slow:")
a.lds_q = []; a.vm_q = []
a.nop(4)
a.valu("v_mov_b32", P[0] + 1, "0")
for j in range(4):
    a.salu(f"s_cmp_le_u32 s{56+j}, {args.forceslow}")
    a.salu(f"s_cbranch_scc1 L_sk{j}")
    a.ds_read("ds_read_b64", GA1, 2, vE1a, 256 * j + 128)
    a.ds_read("ds_read_b64", GA3, 2, vE3a, 256 * j + 128)
    a.ds_read("ds_read_b32", EM, 1, vEMa, 256 * j + 128)
    for t in range(2): gadd(GA1 + t, vG8)
    for i in range(2):
        a.ds_read("ds_read_b64", B1[0][i], 2, GA1 + i, 1600 * j)
    for t in range(2): gadd(GA3 + t, vC8)
    a.valu("v_and_b32", EM, "0xffff0000", EM)
    for u in range(2):
        a.ds_read("ds_read_b64_tr_b16", A3[0] + 2 * u, 2, GA3 + u, 1600 * j)
    for i in range(2):
        a.mfma16(D1[0][i], Aj[j], B1[0][i], Cj[j])
    S(D1[0], P[0])
    a.mfma16(D2, A2, P[0], C2)
    a.valu("v_mul_f32", sc, D2, EM)
    a.valu("v_cvt_pk_bf16_f32", sc, sc, sc)
    a.salu("s_mov_b32 exec_hi, 0")
    a.ds_write("ds_write_b16", vAW, sc, 1, SB_OFF + 64 * j)
    a.salu("s_mov_b32 exec_hi, -1")
    a.ds_read("ds_read_b128", B3, 4, vAB3, SB_OFF)
    a.mfma(D3[j], A3[0], B3, D3[j])
    a.nop(10)
    a.raw(f"L_sk{j}:")
a.raw("    s_branch L_back")
acc = (NVGPR + 3) // 4 * 4
a.raw(f""".section .rodata,"a"
.p2align 6
.amdhsa_kernel {NAME}
  .amdhsa_next_free_vgpr {NVGPR}
  .amdhsa_next_free_sgpr {96 if TS else 64}
  .amdhsa_accum_offset {acc}
  .amdhsa_group_segment_fixed_size 0
  .amdhsa_kernarg_size 80
  .amdhsa_user_sgpr_count 2
  .amdhsa_user_sgpr_kernarg_segment_ptr 1
  .amdhsa_system_sgpr_workgroup_id_x 1
.end_amdhsa_kernel""")
sys.stdout.write(a.text())
sys.stderr.write(f"vgpr {NVGPR} (D1 {maxD1} E1 {maxE1} D2 {maxD2} E2 {maxE2}) nops {main_nops} stat {main_stat} lds {LDS}\n")
```

```python
import sys, argparse, copy
from asmlib import Asm
ap = argparse.ArgumentParser()
ap.add_argument("--ts", type=int, default=0)
ap.add_argument("--forceslow", type=int, default=32)
ap.add_argument("--pst", type=int, default=0)
ap.add_argument("--stflags", type=str, default="")
ap.add_argument("--rot", type=int, default=0)
ap.add_argument("--paths", type=str, default="L1:7;G4:4;G4:4;G4:4")
args = ap.parse_args()
TS = args.ts
WPW = 4

NAME = "standalone__sequential_behavior_din__recsys_kernel"
NWG = 4096 // WPW
S_HEX = "0xbfb8aa3b"
KSH = 24
SC_F32 = (127 - KSH) << 23
SC_BF = (127 - KSH) << 7
IMG_ACS, IMG_WDS, IMG_AP, IMG_B1, IMG_W2, IMG_B2 = 0, 1024, 2048, 3072, 3136, 3200
WAVE0 = 3264
L_OFF = 6400
SB_OFF = L_OFF + 1024
SBLK = [SB_OFF, SB_OFF + 128]
TF_OFF = SB_OFF + 256
WSZ = TF_OFF + 256
CK = (SB_OFF // 32) & ~3
def b3off(j):
    o = SBLK[j >> 1] - CK * 32
    assert o >= 0 and o % 8 == 0 and o // 8 + 8 < 256
    return o // 8
LDS = WAVE0 + WPW * WSZ
assert WAVE0 % 64 == 0 and WSZ % 64 == 0 and LDS <= 40960

a = Asm()
hdr = open("standalone__sequential_behavior_din__recsys.s.ref").read().split("; Override")[0]
a.raw(hdr.rstrip())
a.raw(f"; @launch grid=({NWG},1,1) block=({64*WPW},1,1) lds={LDS}")
a.raw('.amdgcn_target "amdgcn-amd-amdhsa--gfx950"')
a.raw(".text")
a.raw(f".globl {NAME}")
a.raw(".p2align 8")
a.raw(f".type {NAME},@function")
a.raw(f"{NAME}:")

nv = [1]
def V(n=1, al=None):
    al = al or (2 if n > 1 else 1)
    while nv[0] % al: nv[0] += 1
    r = nv[0]; nv[0] += n
    return r
vL16 = V(); vG8 = V(2); vS = vG8 + 1; vC8 = V(); vE1a = V(); vE3a = V(); vEMa = V()
vB1 = vG8; vA3 = vC8; vEg = vE1a; vH = vE3a
W4 = V(4); A2 = V(2); C2 = V(4); vAW = C2 + 1; vAB3 = C2 + 2; vOut = C2 + 3
Aj = [V(2) for _ in range(4)]
Cj = [V(4) for _ in range(4)]
D3 = [V(4), V(4), None, None]
base_tmp = nv[0]
ACS = V(4); WDS = V(4); AP = V(4); B1S = V(4)
T = [V(4) for _ in range(4)]; TM = [V(4) for _ in range(4)]
maxD1 = nv[0]
nv[0] = base_tmp
B1 = [[V(2), V(2)] for _ in range(2)]
D1 = [[V(4), V(4)] for _ in range(2)]
A3 = [V(4) for _ in range(2)]
B3 = V(4); D2 = V(4)
P = [V(2), V(2)]
tn = [V(2), V(2)]
maxE1 = nv[0]
nv[0] = max(maxD1, maxE1)
base2 = nv[0]
wa = V(4); wb = wa + 1; wc = wa + 2; wd = wa + 3
b1v = V(); w2v = V(); tv = V(); b2v = V()
vM = V(4)
vLane = V(); vL2 = V(); vL2m = V(); vT2 = V(); vN = V(); vG = V(); t0 = V(); t1 = V(); t2 = V(); t3 = V()
vPA = V(); vB16 = V(); vTg = V(); vU = V(); vRow = V(); vZ = V()
maxD2 = nv[0]
nv[0] = base2
GA1 = V(8); GA3 = V(8); EM = V(2); sc = V(); o01 = V(2)
GV = GA1; GX = GA3
D3[2] = GA1 + 4; D3[3] = GA3 + 4
maxE2 = nv[0]
NVGPR = max(maxD2, maxE2)
rk = [wa, wb, wc, wd]

stamps = []
def pstamp(idx):
    if args.pst: stamp(idx, True)
def stamp(idx=None, force=False):
    if args.pst and not force and stamps: return
    if TS >= 2:
        r = 68 + 2 * (len(stamps) if idx is None else idx)
        a.salu(f"s_memrealtime s[{r}:{r+1}]")
        if r not in stamps: stamps.append(r)
a.salu(f"s_cmp_ge_u32 s2, {NWG}")
a.salu("s_cbranch_scc1 L_done")
if TS:
    a.salu("s_memrealtime s[60:61]")
    a.salu("s_memtime s[90:91]")
    a.salu("s_load_dwordx2 s[64:65], s[0:1], 72")
a.salu("s_load_dwordx16 s[4:19], s[0:1], 0")
a.salu("s_getreg_b32 s52, hwreg(HW_REG_HW_ID, 0, 4)")
if TS: a.salu("s_mov_b32 s94, s52")
a.valu("v_lshrrev_b32", t0, "6", 0)
a.valu("v_and_b32", vLane, "63", 0)
a.ins("rfl", f"v_readfirstlane_b32 s3, v{t0}", rd=[t0], swr=["s3"])
a.valu("v_add_u32", vT2, 0, 0)
a.valu("v_add_u32", vL2, vLane, vLane)
a.valu("v_add_u32", vL2m, vLane, vLane)
a.valu("v_lshlrev_b32", vL16, "4", vLane)
a.valu("v_and_b32", vN, "15", vLane)
a.valu("v_lshrrev_b32", vG, "4", vLane)
a.valu("v_mov_b32", t3, "0")
a.valu("v_add_u32", t1, vN, vN)
a.salu(f"s_mul_i32 s36, s3, {WSZ}")
a.salu(f"s_add_u32 s36, s36, {WAVE0}")
a.salu(f"s_mul_i32 s32, s2, {WPW}")
a.salu("s_add_u32 s32, s32, s3")
a.salu("s_mul_i32 s33, s32, 6400")
a.salu("s_mul_i32 s34, s32, 400")
a.salu("s_lshl_b32 s35, s32, 7")
a.salu(f"s_add_u32 s41, s36, {L_OFF}")
a.salu("s_mov_b32 s40, s41")
a.salu(f"s_mov_b32 s37, {S_HEX}")
a.salu("s_mov_b32 s22, %d" % (16384 * 1600))
a.salu("s_mov_b32 s23, 0x20000")
a.salu("s_mov_b32 s26, %d" % (16384 * 100))
a.salu("s_mov_b32 s27, 0x20000")
a.salu("s_mov_b32 s30, %d" % (16384 * 32))
a.salu("s_mov_b32 s31, 0x20000")
a.salu("s_mov_b32 s46, %d" % (16384 * 32))
a.salu("s_mov_b32 s47, 0x20000")
a.salu("s_mov_b32 m0, s36", swr=["m0"])
if args.rot:
    a.salu("s_lshr_b32 s53, s2, 3")
    a.salu("s_add_u32 s53, s53, s3")
    a.salu("s_and_b32 s53, s53, 3")
else:
    a.salu("s_mov_b32 s53, s3")
a.valu("v_add_u32", vRow, vL16, vL16)
a.salu("s_mov_b32 exec_lo, 0")
a.salu("s_mov_b32 exec_hi, 0xfffc0000")
a.valu("v_mov_b32", vL2m, "0x7ff00000")
a.valu("v_mov_b32", vRow, str(49 * 32))
a.salu("s_mov_b64 exec, -1")
a._emit("s_waitcnt lgkmcnt(0)")
stamp()

K = ["L"]
issued = [0]
def dma(k):
    if K[0] == "L":
        if k == 4: a.salu("s_add_u32 m0, s36, 4096", swr=["m0"])
        if k == 6: a.salu("s_mov_b64 exec, 0xffff")
        so = "s33" if k < 4 else "s38"
        off = (k % 4) * 1024
        a.ins("dma", f"buffer_load_dwordx4 v{vL16}, s[20:23], {so} offen" + (f" offset:{off}" if off else "") + " lds", rd=[vL16], tag=f"h{k}")
        if k == 6: a.salu("s_mov_b64 exec, -1")
    else:
        if k == 2: a.salu("s_add_u32 m0, s36, 3200", swr=["m0"])
        so = "s33" if k < 2 else "s38"
        off = (k % 2) * 1600
        a.ins("dma", f"buffer_load_dwordx4 v{GV+k}, s[20:23], {so} offen" + (f" offset:{off}" if off else "") + " lds", rd=[GV + k], tag=f"h{k}")
def dma_upto(n):
    while issued[0] < min(n, 7 if K[0] == "L" else 4):
        dma(issued[0]); issued[0] += 1
def add64(r, off, sh=0):
    a.ins("valu", f"v_lshl_add_u64 v[{r}:{r+1}], v[{r}:{r+1}], {sh}, {off}", rd=[r, r + 1], wr=[r, r + 1])
def gadd(q, off):
    a.ins("valu", f"v_add_u32_sdwa v{q}, v{q}, v{off} dst_sel:DWORD dst_unused:UNUSED_PAD src0_sel:WORD_0 src1_sel:DWORD", rd=[q, off], wr=[q])
def pk(op, dst, srcs, mod=""):
    rd = [r + k for r in srcs if isinstance(r, int) for k in range(2)]
    a.ins("valu", f"{op} v[{dst}:{dst+1}], " + ", ".join(f"v[{r}:{r+1}]" if isinstance(r, int) else r for r in srcs) + (" " + mod if mod else ""), rd=rd, wr=[dst, dst + 1])

def prologue(cfg, pi):
    G = K[0] == "G"
    early = (lambda p: None) if G else (lambda p: dma_upto(cfg.get(p, 0)))
    a.salu("s_mov_b32 s20, s6")
    a.salu("s_and_b32 s21, s7, 0xffff")
    a.salu(f"s_add_u32 s38, s33, {3200 if G else 4096}")
    early(-1)
    a.salu("s_cmp_lg_u32 s53, 0")
    a.salu(f"s_cbranch_scc1 L_nb{pi}")
    a.ins("vmem", f"global_load_short_d16_hi v{b2v}, v{t3}, s[16:17]", rd=[t3], wr=[b2v])
    a.ins("vmem", f"global_load_short_d16_hi v{b1v}, v{t1}, s[12:13]", rd=[t1], wr=[b1v])
    a.ins("vmem", f"global_load_short_d16_hi v{w2v}, v{t1}, s[14:15]", rd=[t1], wr=[w2v])
    a.raw(f"L_nb{pi}:")
    for i, r in enumerate((wa, wb, wc, wd)):
        a.ins("vmem", f"global_load_short_d16_hi v{r}, v{vT2}, s[10:11]" + (f" offset:{512*i}" if i else ""), rd=[vT2], wr=[r])
    a.salu("s_mov_b32 s44, s4")
    a.salu("s_and_b32 s45, s5, 0xffff")
    a.ins("vmem", f"buffer_load_short_d16_hi v{tv}, v{vL2}, s[44:47], s35 offen", rd=[vL2], wr=[tv])
    a.salu("s_mov_b32 s24, s8")
    a.salu("s_and_b32 s25, s9, 0xffff")
    for j in range(4):
        a.ins("vmem", f"buffer_load_short_d16_hi v{vM+j}, v{vL2m}, s[24:27], s34 offen" + (f" offset:{100*j}" if j else ""), rd=[vL2m], wr=[vM + j])
    pstamp(1)
    early(0)
    a.salu("s_mov_b32 s28, s18")
    a.salu("s_and_b32 s29, s19, 0xffff")
    a.salu("s_mov_b32 s39, 0xffff")
    a.salu("s_lshl_b32 s49, s3, 8")
    a.salu(f"s_mov_b32 s56, {SC_BF:#x}")
    a.salu("s_mov_b32 s57, 0")
    a.valu("v_sub_u32", vZ, "63", vLane)
    a.valu("v_lshlrev_b32", t0, "3", vG)
    a.valu("v_lshl_add_u32", vOut, vN, "5", t0)
    a.valu("v_add_u32", vB16, t0, t0)
    a.valu("v_add_u32", vTg, "s36", vB16)
    a.valu("v_mov_b32", vS, f"{SC_F32:#x}")
    a.valu("v_add_u32", vAW, "s36", vL2)
    a.valu("v_add_u32", vU, vAW, vL2)
    a.ins("valu", f"v_lshlrev_b64 v[{A2}:{A2+1}], v{vU}, s[56:57]", rd=[vU], wr=[A2, A2 + 1])
    a.salu(f"s_add_u32 s50, s36, {CK*32}")
    a.valu("v_and_b32", t3, "0x38", vOut)
    a.valu("v_add_u32", vAB3, "s50", t3)
    if not G:
        a.valu("v_add_u32", vG8, "s36", t0)
        a.valu("v_and_b32", t3, "3", vLane)
        a.valu("v_lshl_add_u32", vC8, t3, "3", "s36")
        a.valu("v_lshl_add_u32", vE1a, vN, "3", "s41")
        a.valu("v_and_b32", t3, "0x78", vL2)
        a.valu("v_add_u32", vE3a, "s41", t3)
        a.valu("v_lshrrev_b32", t3, "5", vLane)
        a.valu("v_lshl_add_u32", vEMa, t3, "2", vE1a)
        a.valu("v_and_b32", t3, "16", vLane)
        a.valu("v_lshl_add_u32", vEMa, t3, "4", vEMa)
    else:
        a.valu("v_and_b32", t3, "16", vL2)
        a.valu("v_xad_u32", vB1, vOut, t3, "s36")
        a.valu("v_lshrrev_b32", t3, "1", vLane)
        a.valu("v_lshl_add_u32", vEg, t3, "2", "s41")
        a.valu("v_and_b32", t3, "16", t3)
        a.valu("v_lshrrev_b32", t0, "1", vL16)
        a.valu("v_xad_u32", vA3, t0, t3, "s36")
        a.valu("v_xor_b32", vH, vL16, vLane)
        a.valu("v_and_b32", vH, "16", vH)
        a.valu("v_lshl_add_u32", vEMa, t3, "2", "s41")
        a.valu("v_lshl_add_u32", vEMa, vN, "2", vEMa)
        a.valu("v_and_b32", t3, "16", vLane)
        a.valu("v_lshl_add_u32", vEMa, t3, "4", vEMa)
    early(1)
    pstamp(2)
    a.valu("v_lshl_add_u32", t3, vN, "4", "s49")
    a.valu("v_lshl_add_u32", vPA, vG, "2", t3)
    a.valu("v_add_f32", wa, wa, wc)
    pstamp(3)
    a.valu("v_sub_f32", wb, wb, wc)
    a.valu("v_mul_f32", wa, "s37", wa)
    a.valu("v_mul_f32", wb, "s37", wb)
    a.valu("v_mul_f32", wd, "s37", wd)
    a.ds_write("ds_write_b32", vPA, wa, 1, IMG_ACS)
    a.valu("v_cvt_pk_bf16_f32", t1, wb, wb)
    a.ds_write("ds_write_b32", vPA, wd, 1, IMG_WDS)
    a.ds_write("ds_write_b32", vPA, t1, 1, IMG_AP)
    a.salu("s_cmp_lg_u32 s53, 0")
    a.salu(f"s_cbranch_scc1 L_np{pi}")
    a.valu("v_mov_b32", t0, "0xc1c00000")
    a.valu("v_lshlrev_b32", t2, "2", vN)
    a.valu("v_fma_f32", b1v, b1v, "s37", t0)
    a.salu("s_mov_b64 exec, 0xffff")
    a.ds_write("ds_write_b32", t2, b1v, 1, IMG_B1)
    a.ds_write("ds_write_b32", t2, w2v, 1, IMG_W2)
    a.ds_write("ds_write_b32", t2, b2v, 1, IMG_B2)
    a.salu("s_mov_b64 exec, -1")
    a.raw(f"L_np{pi}:")
    early(2)
    a.ds_write("ds_write_b32", vU, tv, 1, TF_OFF)
    def compaction():
        for j in range(4):
            a.ins("valu", f"v_cmp_lt_u32 s[{48+2*j}:{49+2*j}], s39, v{vM+j}", rd=[vM + j], swr=[f"s{48+2*j}", f"s{49+2*j}"])
        for j in range(4): a.valu("v_or_b32", vM + j, vRow, vM + j)
        for j in range(4): a.valu("v_cndmask_b32", rk[j], vZ, "0", f"s[{48+2*j}:{49+2*j}]")
        for j in range(4): a.valu("v_mbcnt_lo_u32_b32", rk[j], f"s{48+2*j}", rk[j])
        for j in range(4): a.valu("v_mbcnt_hi_u32_b32", rk[j], f"s{49+2*j}", rk[j])
        for j in (0, 2): add64(rk[j], "s[40:41]", 2)
        for j in range(4): a.ds_write("ds_write_b32", rk[j], vM + j, 1, 256 * j)
        for j in range(4):
            a.salu(f"s_bcnt1_i32_b64 s{56+j}, s[{48+2*j}:{49+2*j}]")
        a.salu("s_max_u32 s43, s56, s57")
        a.salu("s_max_u32 s48, s58, s59")
        a.salu("s_max_u32 s43, s43, s48")
    def gv_read():
        for j in (0, 2):
            a.ins("ds", f"ds_read2st64_b32 v[{GV+j}:{GV+j+1}], v{vEg} offset0:{j} offset1:{j+1}", rd=[vEg], wr=[GV + j, GV + j + 1])
    def gv_issue(n):
        for j in range(4): gadd(GV + j, vH)
        dma_upto(n)
    pre = G and cfg.get(2, 0) > 0
    if pre:
        compaction(); gv_read(); gv_issue(cfg[2])
    a.wait_lds_all()
    stamp(1)
    pstamp(4)
    a._emit("s_barrier")
    pstamp(5)
    for j in range(2):
        a.ds_read("ds_read_b128", T[j], 4, vTg, TF_OFF + 64 * j)
    a.ds_read("ds_read_b128", ACS, 4, vL16, IMG_ACS)
    a.ds_read("ds_read_b128", WDS, 4, vL16, IMG_WDS)
    for j in range(2, 4):
        a.ds_read("ds_read_b128", T[j], 4, vTg, TF_OFF + 64 * j)
    a.ds_read("ds_read_b128", AP, 4, vL16, IMG_AP)
    a.ds_read("ds_read_b128", B1S, 4, vB16, IMG_B1)
    a.ds_read("ds_read_b128", W4, 4, vB16, IMG_W2)
    a.ds_read("ds_read_b32", C2, 1, vB16, IMG_B2)
    early(3)
    if not pre:
        compaction()
        early(4)
        if G: gv_read()
    if not G:
        for j in range(4):
            a.ds_read("ds_read_b64", GA1 + 2 * j, 2, vE1a, 256 * j)
    for j in range(4):
        for k in (0, 2): pk("v_pk_fma_f32", TM[j] + k, [T[j] + k, WDS + k, ACS + k])
    if G and not pre: gv_issue(cfg.get(4, 0))
    if pre: dma_upto(cfg.get(4, 0))
    if not G:
        for j in range(4):
            a.ds_read("ds_read_b64", GA3 + 2 * j, 2, vE3a, 256 * j)
    for h in range(2):
        a.ds_read("ds_read_u16_d16_hi", EM + h, 1, vEMa, 512 * h + 2)
    for j in range(4):
        a.mfma(Cj[j], AP, T[j], B1S)
    for j in range(4):
        a.valu("v_cvt_pk_bf16_f32", Aj[j], TM[j], TM[j] + 1)
        a.valu("v_cvt_pk_bf16_f32", Aj[j] + 1, TM[j] + 2, TM[j] + 3)
    if not G:
        for t in range(8): gadd(GA1 + t, vG8)
    dma_upto(max(cfg.get(5, 0), 1 if G else 2))

def parse(c): return {int(x.split(":")[0]): int(x.split(":")[1]) for x in c.split(",") if x}
def need(j): return {0: 1, 1: 3, 2: 4, 3: 6}[j] if K[0] == "L" else j
def L(j):
    dma_upto(need(j) + 1)
    a.wait_vm_for(tag=f"h{need(j)}")
    for i in range(2):
        if K[0] == "L": a.ds_read("ds_read_b64", B1[j % 2][i], 2, GA1 + 2 * j + i, 1600 * j)
        else: a.ds_read("ds_read_b64", B1[j % 2][i], 2, vB1, 1600 * j + 512 * i)
def M(j):
    for i in range(2):
        a.mfma16(D1[j % 2][i], Aj[j], B1[j % 2][i], Cj[j])
def S(dd, dst, second, mid=None):
    A_, B_ = dd
    u = tn[0]; assert tn[1] == u + 2
    Pp = [u, u + 2, A_, B_]
    for (h, r) in ((0, 0), (0, 1), (0, 2), (1, 0), (1, 1), (0, 3), (1, 2), (1, 3)):
        a.ins("trans", f"v_exp_f32_e64 v{Pp[r]+h}, v{dd[h]+r} clamp", rd=[dd[h] + r], wr=[Pp[r] + h])
    if mid: mid()
    n01, n23 = A_ + 2, B_ + 2
    for r in range(4): pk("v_pk_add_f32", Pp[r], [Pp[r], vG8], "op_sel:[0,1] op_sel_hi:[1,1]")
    pk("v_pk_mul_f32", n01, [W4, Pp[1]], "op_sel:[0,0] op_sel_hi:[0,1]")
    pk("v_pk_mul_f32", n23, [W4 + 2, Pp[3]], "op_sel:[0,0] op_sel_hi:[0,1]")
    pk("v_pk_fma_f32", n01, [W4, Pp[0], n01], "op_sel:[1,0,0] op_sel_hi:[1,1,1]")
    pk("v_pk_fma_f32", n23, [W4 + 2, Pp[2], n23], "op_sel:[1,0,0] op_sel_hi:[1,1,1]")
    pk("v_pk_mul_f32", Pp[0], [Pp[0], Pp[1]])
    pk("v_pk_mul_f32", Pp[2], [Pp[2], Pp[3]])
    pk("v_pk_mul_f32", Pp[1], [Pp[0], Pp[2]])
    pk("v_pk_mul_f32", n01, [n01, Pp[2]])
    for i in range(2): a.valu("v_rcp_f32", Pp[1] + i, Pp[1] + i, kind="trans")
    pk("v_pk_fma_f32", n01, [n23, Pp[0], n01])
    if second == 0:
        pk("v_pk_mul_f32", dst, [n01, Pp[1]])
    else:
        pk("v_pk_mul_f32", n01, [n01, Pp[1]])
        for i in range(2):
            a.valu("v_cvt_pk_bf16_f32", dst + i, (dst if second == 1 else n01) + i, n01 + i)
def Sj(j, mid=None):
    S(D1[j % 2], P[j // 2], j % 2, mid)
def W(h):
    a.mfma16(D2, A2, P[h], C2)
def T3(h):
    for i in range(2):
        j = 2 * h + i
        for u in range(2):
            if K[0] == "L": a.ds_read("ds_read_b64_tr_b16", A3[i] + 2 * u, 2, GA3 + 2 * j + u, 1600 * j)
            else: a.ds_read("ds_read_b64_tr_b16", A3[i] + 2 * u, 2, vA3, 1600 * j + 512 * u)
def rdB3(dst, j):
    o = b3off(j)
    a.ins("ds", f"ds_read2_b64 v[{dst}:{dst+3}], v{vAB3} offset0:{o} offset1:{o+8}", rd=[vAB3], wr=range(dst, dst + 4))
def X(h):
    a.valu("v_mul_f32", sc, D2, EM + h)
    a.valu("v_cvt_pk_bf16_f32", sc, sc, sc)
    a.ds_write("ds_write_b16", vAW, sc, 1, SBLK[h])
    rdB3(B3, 2 * h)
def Y(h):
    for i in range(2): a.mfma(D3[2 * h + i], A3[i], B3, "0")

def main1(CM, pi):
    G = K[0] == "G"
    if G:
        a.salu(f"s_cmp_gt_u32 s43, {args.forceslow}")
        a.salu(f"s_cbranch_scc1 L_xd{pi}")
        a.raw(f"L_xb{pi}:")
        a.m0_write = a.pos
    stamp(2)
    L(0)
    dma_upto(CM.get(6, 0))
    if not G:
        for t in range(8): gadd(GA3 + t, vC8)
    M(0)
    dma_upto(CM.get(7, 0))
    Sj(0, mid=lambda: (L(1), dma_upto(CM.get(8, 0))))
    M(1)
    dma_upto(CM.get(9, 0))
    stamp(3)
    Sj(1, mid=lambda: (L(2), T3(0), dma_upto(CM.get(10, 0))))
    M(2)
    W(0)
    dma_upto(7)
    stamp(4)
    Sj(2, mid=lambda: X(0))
    Y(0)
    L(3)
    T3(1)
    M(3)
    stamp(5)
    Sj(3)
    W(1)
    X(1)
    Y(1)
    assert not a.lds_q and not a.vm_q
    a.salu(f"s_cmp_gt_u32 s43, {args.forceslow}")
    a.salu(f"s_cbranch_scc1 L_slow{K[0]}")

paths = args.paths.split(";")
assert len(paths) == 4
groups = []
for sl, c in enumerate(paths):
    if not groups or groups[-1][1] != c: groups.append((sl, c))
for gi in range(len(groups) - 1, 0, -1):
    a.salu(f"s_cmp_ge_u32 s52, {groups[gi][0]}")
    a.salu(f"s_cbranch_scc1 L_path{gi}")
snap = copy.deepcopy({k: v for k, v in a.__dict__.items() if k != "lines"})
xd = []
for gi, (sl, c) in enumerate(groups):
    if gi: a.raw(f"L_path{gi}:")
    a.__dict__.update(copy.deepcopy(snap)); issued[0] = 0
    K[0] = c[0]; cfg = parse(c[1:])
    prologue(cfg, gi)
    if K[0] == "G": xd.append((gi, issued[0]))
    main1(cfg, gi)
    sys.stderr.write(f"path {c}: nops {a.nops} stat {a.stat}\n")
    if gi < len(groups) - 1: a.salu("s_branch L_back")
a.raw("L_back:")
a.nop(2)
for j in range(4):
    m = (1 << j) | (1 << (j + 16))
    a.salu(f"s_mov_b32 exec_lo, {m:#x}")
    a.salu(f"s_mov_b32 exec_hi, {m:#x}")
    a.valu("v_cvt_pk_bf16_f32", o01, D3[j], D3[j] + 1)
    a.valu("v_cvt_pk_bf16_f32", o01 + 1, D3[j] + 2, D3[j] + 3)
a.salu("s_mov_b32 exec_lo, 0x000f000f")
a.salu("s_mov_b32 exec_hi, 0x000f000f")
a.ins("vmemst", f"buffer_store_dwordx2 v[{o01}:{o01+1}], v{vOut}, s[28:31], s35 offen {args.stflags}", rd=[o01, o01 + 1, vOut])
if TS:
    a.raw("""    s_waitcnt vmcnt(0)
    s_memrealtime s[62:63]
    s_memtime s[92:93]
    s_lshl_b32 s66, s32, 4
    v_mov_b32 v1, s66
    s_waitcnt lgkmcnt(0)
    v_mov_b32 v4, s60
    s_sub_u32 s92, s92, s90
    v_mov_b32 v5, s92
    v_mov_b32 v6, s62
    s_lshl_b32 s95, s43, 8
    s_or_b32 s94, s94, s95
    s_getreg_b32 s95, hwreg(HW_REG_HW_ID, 8, 8)
    s_lshl_b32 s95, s95, 16
    s_or_b32 s94, s94, s95
    v_mov_b32 v7, s94
    s_mov_b64 exec, 1
    global_store_dwordx4 v1, v[4:7], s[64:65]""")
    if TS >= 2:
        a.raw("    s_lshl_b32 s66, s32, 5\n    s_add_u32 s66, s66, 0x100000\n    v_mov_b32 v1, s66")
        st = [60] + stamps + [62]
        assert len(st) == 8
        for i, r in enumerate(st):
            a.raw(f"    v_mov_b32 v{8+i}, s{r}")
        a.raw("    global_store_dwordx4 v1, v[8:11], s[64:65]\n    global_store_dwordx4 v1, v[12:15], s[64:65] offset:16")
a.raw("L_done:")
a.raw("    s_endpgm")
for gi, nis in xd:
    a.raw(f"L_xd{gi}:")
    a.lds_q = []; a.vm_q = []
    a._emit("s_waitcnt lgkmcnt(0)")
    for j in range(4):
        a.salu(f"s_cmp_le_u32 s{56+j}, {args.forceslow}")
        a.salu(f"s_cbranch_scc1 L_xs{gi}_{j}")
        a.ds_read("ds_read_b32", GX + j, 1, vEg, 256 * j + 128)
        a.salu(f"s_add_u32 m0, s36, {1600*j+1024}", swr=["m0"])
        a.salu(f"s_add_u32 s48, s33, {1600*j}")
        gadd(GX + j, vH)
        a.salu("s_mov_b32 exec_hi, 15")
        a.ins("dma", f"buffer_load_dwordx4 v{GX+j}, s[20:23], s48 offen lds", rd=[GX + j], tag="x")
        a.salu("s_mov_b32 exec_hi, -1")
        a.raw(f"L_xs{gi}_{j}:")
    a.salu(f"s_add_u32 m0, s36, {3200 if nis > 2 else 0}", swr=["m0"])
    a.raw(f"    s_branch L_xb{gi}")
for kind in sorted(set(c[0] for sl, c in groups)):
    K[0] = kind; G = kind == "G"
    a.raw(f"L_slow{kind}:")
    a.lds_q = []; a.vm_q = []
    a.nop(4)
    for j in range(4):
        a.salu(f"s_cmp_le_u32 s{56+j}, {args.forceslow}")
        a.salu(f"s_cbranch_scc1 L_sk{kind}{j}")
        if not G:
            a.ds_read("ds_read_b64", GA1, 2, vE1a, 256 * j + 128)
            a.ds_read("ds_read_b64", GA3, 2, vE3a, 256 * j + 128)
        a.ds_read("ds_read_u16_d16_hi", EM, 1, vEMa, 256 * j + 2 + 128)
        if not G:
            for t in range(2): gadd(GA1 + t, vG8)
        for i in range(2):
            if G: a.ds_read("ds_read_b64", B1[0][i], 2, vB1, 1600 * j + 1024 + 512 * i)
            else: a.ds_read("ds_read_b64", B1[0][i], 2, GA1 + i, 1600 * j)
        if not G:
            for t in range(2): gadd(GA3 + t, vC8)
        for u in range(2):
            if G: a.ds_read("ds_read_b64_tr_b16", A3[0] + 2 * u, 2, vA3, 1600 * j + 1024 + 512 * u)
            else: a.ds_read("ds_read_b64_tr_b16", A3[0] + 2 * u, 2, GA3 + u, 1600 * j)
        for i in range(2):
            a.mfma16(D1[0][i], Aj[j], B1[0][i], Cj[j])
        S(D1[0], P[0], 2)
        a.mfma16(D2, A2, P[0], C2)
        a.valu("v_mul_f32", sc, D2, EM)
        a.valu("v_cvt_pk_bf16_f32", sc, sc, sc)
        a.salu("s_mov_b32 exec_lo, 0xffff")
        a.salu("s_mov_b32 exec_hi, 0xffff")
        a.ds_write("ds_write_b16", vAW, sc, 1, SBLK[j >> 1] + 32 * (j & 1))
        a.salu("s_mov_b64 exec, -1")
        rdB3(B3, j)
        a.mfma(D3[j], A3[0], B3, D3[j])
        a.nop(10)
        a.raw(f"L_sk{kind}{j}:")
    a.raw("    s_branch L_back")
acc = (NVGPR + 3) // 4 * 4
a.raw(f""".section .rodata,"a"
.p2align 6
.amdhsa_kernel {NAME}
  .amdhsa_next_free_vgpr {NVGPR}
  .amdhsa_next_free_sgpr {96 if TS else 64}
  .amdhsa_accum_offset {acc}
  .amdhsa_group_segment_fixed_size 0
  .amdhsa_kernarg_size 80
  .amdhsa_user_sgpr_count 2
  .amdhsa_user_sgpr_kernarg_segment_ptr 1
  .amdhsa_system_sgpr_workgroup_id_x 1
.end_amdhsa_kernel""")
sys.stdout.write(a.text())
sys.stderr.write(f"vgpr {NVGPR} lds {LDS}\n")
```

```python
import sys, argparse, copy
from asmlib import Asm
ap = argparse.ArgumentParser()
ap.add_argument("--ts", type=int, default=0)
ap.add_argument("--forceslow", type=int, default=32)
ap.add_argument("--pst", type=int, default=0)
ap.add_argument("--stflags", type=str, default="")
ap.add_argument("--rot", type=int, default=0)
ap.add_argument("--eb", type=int, default=1)
ap.add_argument("--pf", type=int, default=0)
ap.add_argument("--ldl", type=int, default=0)
ap.add_argument("--mf", type=int, default=1)
ap.add_argument("--tx", type=int, default=1)
ap.add_argument("--ecv", type=int, default=1)
ap.add_argument("--paths", type=str, default="L1:7;G4:4;G4:4;G4:4")
args = ap.parse_args()
TS = args.ts
WPW = 4

NAME = "standalone__sequential_behavior_din__recsys_kernel"
NWG = 4096 // WPW
S_HEX = "0xbfb8aa3b"
KSH = 24
SC_F32 = (127 - KSH) << 23
SC_BF = (127 - KSH) << 7
IMG_ACS, IMG_WDS, IMG_AP, IMG_B1, IMG_W2, IMG_B2 = 0, 1024, 2048, 3072, 3136, 3200
WAVE0 = 3264
L_OFF = 6400
SB_OFF = L_OFF + 1024
SBLK = [SB_OFF, SB_OFF + 128]
TF_OFF = SB_OFF + 256
WSZ = TF_OFF + 256
CK = (SB_OFF // 32) & ~3
def b3off(j):
    o = SBLK[j >> 1] - CK * 32
    assert o >= 0 and o % 8 == 0 and o // 8 + 8 < 256
    return o // 8
LDS = WAVE0 + WPW * WSZ
assert WAVE0 % 64 == 0 and WSZ % 64 == 0 and LDS <= 40960

a = Asm()
hdr = open("standalone__sequential_behavior_din__recsys.s.ref").read().split("; Override")[0]
a.raw(hdr.rstrip())
a.raw(f"; @launch grid=({NWG},1,1) block=({64*WPW},1,1) lds={LDS}")
a.raw('.amdgcn_target "amdgcn-amd-amdhsa--gfx950"')
a.raw(".text")
a.raw(f".globl {NAME}")
a.raw(".p2align 8")
a.raw(f".type {NAME},@function")
a.raw(f"{NAME}:")

nv = [1]
def V(n=1, al=None):
    al = al or (2 if n > 1 else 1)
    while nv[0] % al: nv[0] += 1
    r = nv[0]; nv[0] += n
    return r
vL16 = V(); vG8 = V(2); vS = vG8 + 1; vC8 = V(); vE1a = V(); vE3a = V(); vEMa = V()
vB1 = vG8; vA3 = vC8; vEg = vE1a; vH = vE3a
W4 = V(4); A2 = V(2); C2 = V(4); vAW = C2 + 1; vAB3 = C2 + 2; vOut = C2 + 3
Aj = [V(2) for _ in range(4)]
Cj = [V(4) for _ in range(4)]
D3 = [V(4), V(4), None, None]
base_tmp = nv[0]
ACS = V(4); WDS = V(4); AP = V(4); B1S = V(4)
T = [V(4) for _ in range(4)]; TM = [V(4) for _ in range(4)]
maxD1 = nv[0]
nv[0] = base_tmp
B1 = [[V(2), V(2)] for _ in range(2)]
D1 = [[V(4), V(4)] for _ in range(2)]
A3 = [V(4) for _ in range(2)]
B3 = V(4); D2 = V(4)
P = [V(2), V(2)]
tn = [V(2), V(2)]
maxE1 = nv[0]
nv[0] = max(maxD1, maxE1)
base2 = nv[0]
wa = V(4); wb = wa + 1; wc = wa + 2; wd = wa + 3
b1v = V(); w2v = V(); tv = V(); b2v = V()
vM = V(4)
vLane = V(); vL2 = V(); vL2m = V(); vT2 = V(); vN = V(); vG = V(); t0 = V(); t1 = V(); t2 = V(); t3 = V()
vPA = V(); vB16 = V(); vTg = V(); vU = V(); vRow = V(); vZ = V()
maxD2 = nv[0]
nv[0] = base2
GA1 = V(8); GA3 = V(8); EM = V(2); sc = V(); o01 = V(2)
GV = GA3; GX = GA1 if not args.tx else TM[3];
D3[2] = GA1 + 4; D3[3] = GA3 + 4
assert sc % 2 == 0 and o01 == sc + 2
EMP = [GA1, GA1 + 2, EM, sc]
SELA = A2; SELB = C2; B2G = C2 + 2
maxE2 = nv[0]
NVGPR = max(maxD2, maxE2)
rk = [wa, wb, wc, wd]

stamps = []
def pstamp(idx):
    if args.pst: stamp(idx, True)
def stamp(idx=None, force=False):
    if args.pst and not force and stamps: return
    if TS >= 2:
        r = 68 + 2 * (len(stamps) if idx is None else idx)
        a.salu(f"s_memrealtime s[{r}:{r+1}]")
        if r not in stamps: stamps.append(r)
a.salu(f"s_cmp_ge_u32 s2, {NWG}")
a.salu("s_cbranch_scc1 L_done")
if TS:
    a.salu("s_memrealtime s[60:61]")
    a.salu("s_memtime s[90:91]")
    a.salu("s_load_dwordx2 s[64:65], s[0:1], 72")
a.salu("s_load_dwordx16 s[4:19], s[0:1], 0")
a.salu("s_getreg_b32 s52, hwreg(HW_REG_HW_ID, 0, 4)")
if TS: a.salu("s_mov_b32 s94, s52")
def head1(pi):
    a.valu("v_lshrrev_b32", t0, "6", 0)
    a.valu("v_and_b32", vLane, "63", 0)
    a.ins("rfl", f"v_readfirstlane_b32 s3, v{t0}", rd=[t0], swr=["s3"])
    if args.pf and pi == 0:
        a.salu("s_getpc_b64 s[54:55]")
        a.raw("L_pc:")
        if args.pf >= 2:
            a.salu("s_cmp_lg_u32 s3, 0")
            a.salu("s_cbranch_scc1 L_npf")
        a.valu("v_lshlrev_b32", t2, "7", vLane)
        a.valu("v_add_u32", vPA, "0x2000", t2)
        a.valu("v_min_u32", t2, "L_codeend-L_pc-4", t2)
        a.valu("v_min_u32", vPA, "L_codeend-L_pc-4", vPA)
        a._emit(f"global_load_dword v{Cj[0]}, v{t2}, s[54:55]")
        a._emit(f"global_load_dword v{Cj[0]+1}, v{vPA}, s[54:55]")
        a.raw("L_npf:")
    a.valu("v_add_u32", vT2, 0, 0)
    a.valu("v_add_u32", vL2, vLane, vLane)
    a.valu("v_add_u32", vL2m, vLane, vLane)
    a.valu("v_lshlrev_b32", vL16, "4", vLane)
    a.valu("v_and_b32", vN, "15", vLane)
    a.valu("v_lshrrev_b32", vG, "4", vLane)
    a.valu("v_mov_b32", t3, "0")
    a.valu("v_add_u32", t1, vN, vN)
    a.salu(f"s_mul_i32 s36, s3, {WSZ}")
    a.salu(f"s_add_u32 s36, s36, {WAVE0}")
    a.salu(f"s_mul_i32 s32, s2, {WPW}")
    a.salu("s_add_u32 s32, s32, s3")
    a.salu("s_mul_i32 s33, s32, 6400")
    a.salu("s_mul_i32 s34, s32, 400")
    a.salu("s_lshl_b32 s35, s32, 7")
    a.salu(f"s_add_u32 s41, s36, {L_OFF}")
    a.salu("s_mov_b32 s40, s41")
    a.salu(f"s_mov_b32 s37, {S_HEX}")
    a.salu("s_mov_b32 s22, %d" % (16384 * 1600))
    a.salu("s_mov_b32 s23, 0x20000")
    a.salu("s_mov_b32 s26, %d" % (16384 * 100))
    a.salu("s_mov_b32 s27, 0x20000")
    a.salu("s_mov_b32 s30, %d" % (16384 * 32))
    a.salu("s_mov_b32 s31, 0x20000")
    a.salu("s_mov_b32 s46, %d" % (16384 * 32))
    a.salu("s_mov_b32 s47, 0x20000")
    a.salu("s_mov_b32 m0, s36", swr=["m0"])
    if args.rot:
        a.salu("s_lshr_b32 s42, s2, 3")
        a.salu("s_add_u32 s42, s42, s3")
        a.salu("s_and_b32 s42, s42, 3")
    else:
        a.salu("s_mov_b32 s42, s3")
    a.valu("v_add_u32", vRow, vL16, vL16)
    a.salu("s_mov_b32 exec_lo, 0")
    a.salu("s_mov_b32 exec_hi, 0xfffc0000")
    a.valu("v_mov_b32", vL2m, "0x7ff00000")
    a.valu("v_mov_b32", vRow, str(49 * 32))
    a.salu("s_mov_b64 exec, -1")
    a._emit("s_waitcnt lgkmcnt(0)")
    stamp(0, True)


if not args.eb: head1(0)
K = ["L"]
issued = [0]
def dma(k):
    if K[0] == "L":
        if k == 4: a.salu("s_add_u32 m0, s36, 4096", swr=["m0"])
        if k == 6: a.salu("s_mov_b64 exec, 0xffff")
        so = "s33" if k < 4 else "s38"
        off = (k % 4) * 1024
        a.ins("dma", f"buffer_load_dwordx4 v{vL16}, s[20:23], {so} offen" + (f" offset:{off}" if off else "") + " lds", rd=[vL16], tag=f"h{k}")
        if k == 6: a.salu("s_mov_b64 exec, -1")
    else:
        if k == 2: a.salu("s_add_u32 m0, s36, 3200", swr=["m0"])
        so = "s33" if k < 2 else "s38"
        off = (k % 2) * 1600
        a.ins("dma", f"buffer_load_dwordx4 v{GV+k}, s[20:23], {so} offen" + (f" offset:{off}" if off else "") + " lds", rd=[GV + k], tag=f"h{k}")
def dma_upto(n):
    while issued[0] < min(n, 7 if K[0] == "L" else 4):
        dma(issued[0]); issued[0] += 1
def add64(r, off, sh=0):
    a.ins("valu", f"v_lshl_add_u64 v[{r}:{r+1}], v[{r}:{r+1}], {sh}, {off}", rd=[r, r + 1], wr=[r, r + 1])
def gadd(q, off):
    a.ins("valu", f"v_add_u32_sdwa v{q}, v{q}, v{off} dst_sel:DWORD dst_unused:UNUSED_PAD src0_sel:WORD_0 src1_sel:DWORD", rd=[q, off], wr=[q])
def pk(op, dst, srcs, mod=""):
    rd = [r + k for r in srcs if isinstance(r, int) for k in range(2)]
    a.ins("valu", f"{op} v[{dst}:{dst+1}], " + ", ".join(f"v[{r}:{r+1}]" if isinstance(r, int) else r for r in srcs) + (" " + mod if mod else ""), rd=rd, wr=[dst, dst + 1])

def prologue(cfg, pi):
    G = K[0] == "G"
    early = (lambda p: None) if G else (lambda p: dma_upto(cfg.get(p, 0)))
    a.salu("s_mov_b32 s20, s6")
    a.salu("s_and_b32 s21, s7, 0xffff")
    a.salu(f"s_add_u32 s38, s33, {3200 if G else 4096}")
    early(-1)
    a.salu("s_cmp_lg_u32 s42, 0")
    a.salu(f"s_cbranch_scc1 L_nb{pi}")
    a.ins("vmem", f"global_load_short_d16_hi v{b2v}, v{t3}, s[16:17]", rd=[t3], wr=[b2v])
    a.ins("vmem", f"global_load_short_d16_hi v{b1v}, v{t1}, s[12:13]", rd=[t1], wr=[b1v])
    a.ins("vmem", f"global_load_short_d16_hi v{w2v}, v{t1}, s[14:15]", rd=[t1], wr=[w2v])
    a.raw(f"L_nb{pi}:")
    def ld_w():
        for i, r in enumerate((wa, wb, wc, wd)):
            a.ins("vmem", f"global_load_short_d16_hi v{r}, v{vT2}, s[10:11]" + (f" offset:{512*i}" if i else ""), rd=[vT2], wr=[r])
        a.salu("s_mov_b32 s44, s4")
        a.salu("s_and_b32 s45, s5, 0xffff")
        a.ins("vmem", f"buffer_load_short_d16_hi v{tv}, v{vL2}, s[44:47], s35 offen", rd=[vL2], wr=[tv])
    def ld_m():
        a.salu("s_mov_b32 s24, s8")
        a.salu("s_and_b32 s25, s9, 0xffff")
        for j in range(4):
            a.ins("vmem", f"buffer_load_short_d16_hi v{vM+j}, v{vL2m}, s[24:27], s34 offen" + (f" offset:{100*j}" if j else ""), rd=[vL2m], wr=[vM + j])
    mf = G and args.mf
    ec = mf and cfg.get(2, 0) > 0
    if mf: ld_m(); ld_w()
    else: ld_w(); ld_m()
    pstamp(1)
    early(0)
    a.salu("s_mov_b32 s28, s18")
    a.salu("s_and_b32 s29, s19, 0xffff")
    a.salu("s_mov_b32 s39, 0xffff")
    a.salu("s_lshl_b32 s49, s3, 8")
    a.salu(f"s_mov_b32 s56, {SC_BF:#x}")
    a.salu("s_mov_b32 s57, 0")
    a.valu("v_sub_u32", vZ, "63", vLane)
    a.valu("v_lshlrev_b32", t0, "3", vG)
    a.valu("v_lshl_add_u32", vOut, vN, "5", t0)
    a.valu("v_add_u32", vB16, t0, t0)
    a.valu("v_add_u32", vTg, "s36", vB16)
    a.valu("v_mov_b32", vS, f"{SC_F32:#x}")
    TX = G and args.tx
    if TX:
        a.valu("v_lshl_add_u32", vU, vLane, "2", "s36")
        a.valu("v_lshlrev_b32", SELA, vL16, "s56")
        a.valu("v_mov_b32", SELA + 1, "0")
        a.valu("v_mov_b32", SELB, "0")
        a.valu("v_mov_b32", SELB + 1, SELA)
    else:
        a.valu("v_add_u32", vAW, "s36", vL2)
        a.valu("v_add_u32", vU, vAW, vL2)
        a.ins("valu", f"v_lshlrev_b64 v[{A2}:{A2+1}], v{vU}, s[56:57]", rd=[vU], wr=[A2, A2 + 1])
        a.salu(f"s_add_u32 s50, s36, {CK*32}")
        a.valu("v_and_b32", t3, "0x38", vOut)
        a.valu("v_add_u32", vAB3, "s50", t3)
    if not G:
        a.valu("v_add_u32", vG8, "s36", t0)
        a.valu("v_and_b32", t3, "3", vLane)
        a.valu("v_lshl_add_u32", vC8, t3, "3", "s36")
        a.valu("v_lshl_add_u32", vE1a, vN, "3", "s41")
        a.valu("v_and_b32", t3, "0x78", vL2)
        a.valu("v_add_u32", vE3a, "s41", t3)
        a.valu("v_lshrrev_b32", t3, "5", vLane)
        a.valu("v_lshl_add_u32", vEMa, t3, "2", vE1a)
        a.valu("v_and_b32", t3, "16", vLane)
        a.valu("v_lshl_add_u32", vEMa, t3, "4", vEMa)
    else:
        a.valu("v_and_b32", t3, "16", vL2)
        a.valu("v_xad_u32", vB1, vOut, t3, "s36")
        a.valu("v_lshrrev_b32", t3, "1", vLane)
        a.valu("v_lshl_add_u32", vEg, t3, "2", "s41")
        a.valu("v_and_b32", t3, "16", t3)
        a.valu("v_lshrrev_b32", t0, "1", vL16)
        a.valu("v_xad_u32", vA3, t0, t3, "s36")
        a.valu("v_xor_b32", vH, vL16, vLane)
        a.valu("v_and_b32", vH, "16", vH)
        if TX:
            a.valu("v_lshl_add_u32", vEMa, vN, "2", "s41")
        else:
            a.valu("v_lshl_add_u32", vEMa, t3, "2", "s41")
            a.valu("v_lshl_add_u32", vEMa, vN, "2", vEMa)
            a.valu("v_and_b32", t3, "16", vLane)
            a.valu("v_lshl_add_u32", vEMa, t3, "4", vEMa)
    rk = [T[0], T[0] + 1, T[0] + 2, T[0] + 3] if ec else [wa, wb, wc, wd]
    def compaction():
        for j in range(4):
            a.ins("valu", f"v_cmp_lt_u32 s[{48+2*j}:{49+2*j}], s39, v{vM+j}", rd=[vM + j], swr=[f"s{48+2*j}", f"s{49+2*j}"])
        for j in range(4): a.valu("v_or_b32", vM + j, vRow, vM + j)
        for j in range(4): a.valu("v_cndmask_b32", rk[j], vZ, "0", f"s[{48+2*j}:{49+2*j}]")
        for j in range(4): a.valu("v_mbcnt_lo_u32_b32", rk[j], f"s{48+2*j}", rk[j])
        for j in range(4): a.valu("v_mbcnt_hi_u32_b32", rk[j], f"s{49+2*j}", rk[j])
        for j in (0, 2): add64(rk[j], "s[40:41]", 2)
        for j in range(4): a.ds_write("ds_write_b32", rk[j], vM + j, 1, 256 * j)
        for j in range(4):
            a.salu(f"s_bcnt1_i32_b64 s{56+j}, s[{48+2*j}:{49+2*j}]")
        a.salu("s_max_u32 s43, s56, s57")
        a.salu("s_max_u32 s48, s58, s59")
        a.salu("s_max_u32 s43, s43, s48")
    def gv_read():
        for j in (0, 2):
            a.ins("ds", f"ds_read2st64_b32 v[{GV+j}:{GV+j+1}], v{vEg} offset0:{j} offset1:{j+1}", rd=[vEg], wr=[GV + j, GV + j + 1])
    def gv_issue(n):
        for j in range(4): gadd(GV + j, vH)
        dma_upto(n)
    a.valu("v_lshl_add_u32", t3, vN, "4", "s49")
    a.valu("v_lshl_add_u32", vPA, vG, "2", t3)
    if not G and args.ldl:
        for _ in range(args.ldl): a.salu("s_nop 15")
    early(1)
    pstamp(2)
    if ec:
        compaction(); gv_read()
        pstamp(3)
        gv_issue(cfg[2])
    a.valu("v_add_f32", wa, wa, wc)
    if not ec: pstamp(3)
    a.valu("v_sub_f32", wb, wb, wc)
    a.valu("v_mul_f32", wa, "s37", wa)
    a.valu("v_mul_f32", wb, "s37", wb)
    a.valu("v_mul_f32", wd, "s37", wd)
    a.ds_write("ds_write_b32", vPA, wa, 1, IMG_ACS)
    a.valu("v_cvt_pk_bf16_f32", t1, wb, wb)
    a.ds_write("ds_write_b32", vPA, wd, 1, IMG_WDS)
    a.ds_write("ds_write_b32", vPA, t1, 1, IMG_AP)
    a.salu("s_cmp_lg_u32 s42, 0")
    a.salu(f"s_cbranch_scc1 L_np{pi}")
    a.valu("v_mov_b32", t0, "0xc1c00000")
    a.valu("v_lshlrev_b32", t2, "2", vN)
    a.valu("v_fma_f32", b1v, b1v, "s37", t0)
    a.salu("s_mov_b64 exec, 0xffff")
    a.ds_write("ds_write_b32", t2, b1v, 1, IMG_B1)
    a.ds_write("ds_write_b32", t2, w2v, 1, IMG_W2)
    a.ds_write("ds_write_b32", t2, b2v, 1, IMG_B2)
    a.salu("s_mov_b64 exec, -1")
    a.raw(f"L_np{pi}:")
    early(2)
    a.ds_write("ds_write_b32", vU, tv, 1, TF_OFF)
    pre = G and cfg.get(2, 0) > 0
    if pre and not ec:
        compaction(); gv_read(); gv_issue(cfg[2])
    a.wait_lds_all()
    stamp(1)
    pstamp(4)
    a._emit("s_barrier")
    pstamp(5)
    for j in range(2):
        a.ds_read("ds_read_b128", T[j], 4, vTg, TF_OFF + 64 * j)
    a.ds_read("ds_read_b128", ACS, 4, vL16, IMG_ACS)
    a.ds_read("ds_read_b128", WDS, 4, vL16, IMG_WDS)
    for j in range(2, 4):
        a.ds_read("ds_read_b128", T[j], 4, vTg, TF_OFF + 64 * j)
    a.ds_read("ds_read_b128", AP, 4, vL16, IMG_AP)
    a.ds_read("ds_read_b128", B1S, 4, vB16, IMG_B1)
    a.ds_read("ds_read_b128", W4, 4, vB16, IMG_W2)
    a.ds_read("ds_read_b32", B2G if TX else C2, 1, vB16, IMG_B2)
    early(3)
    if not pre:
        compaction()
        early(4)
        if G: gv_read()
    if not G:
        for j in range(4):
            a.ds_read("ds_read_b64", GA1 + 2 * j, 2, vE1a, 256 * j)
    for j in range(4):
        for k in (0, 2): pk("v_pk_fma_f32", TM[j] + k, [T[j] + k, WDS + k, ACS + k])
    if G and not pre: gv_issue(cfg.get(4, 0))
    if pre: dma_upto(cfg.get(4, 0))
    if not G:
        for j in range(4):
            a.ds_read("ds_read_b64", GA3 + 2 * j, 2, vE3a, 256 * j)
    if TX:
        for j in range(4):
            for i in range(2): a.ds_read("ds_read_u16_d16_hi", EMP[j] + i, 1, vEMa, 256 * j + 64 * i + 2)
        a.valu("v_mul_f32", B2G, f"{(127 + KSH - 2) << 23:#x}", B2G)
    else:
        for h in range(2):
            a.ds_read("ds_read_u16_d16_hi", EM + h, 1, vEMa, 512 * h + 2)
    for j in range(4):
        a.mfma(Cj[j], AP, T[j], B1S)
    for j in range(4):
        a.valu("v_cvt_pk_bf16_f32", Aj[j], TM[j], TM[j] + 1)
        a.valu("v_cvt_pk_bf16_f32", Aj[j] + 1, TM[j] + 2, TM[j] + 3)
    if not G:
        for t in range(8): gadd(GA1 + t, vG8)
    dma_upto(max(cfg.get(5, 0), 1 if G else 2))

def parse(c): return {int(x.split(":")[0]): int(x.split(":")[1]) for x in c.split(",") if x}
def need(j): return {0: 1, 1: 3, 2: 4, 3: 6}[j] if K[0] == "L" else j
def L(j):
    dma_upto(need(j) + 1)
    a.wait_vm_for(tag=f"h{need(j)}")
    for i in range(2):
        if K[0] == "L": a.ds_read("ds_read_b64", B1[j % 2][i], 2, GA1 + 2 * j + i, 1600 * j)
        else: a.ds_read("ds_read_b64", B1[j % 2][i], 2, vB1, 1600 * j + 512 * i)
def M(j):
    for i in range(2):
        a.mfma16(D1[j % 2][i], Aj[j], B1[j % 2][i], Cj[j])
def S(dd, dst, second, mid=None, em=None):
    A_, B_ = dd
    u = tn[0]; assert tn[1] == u + 2
    Pp = [u, u + 2, A_, B_]
    for (h, r) in ((0, 0), (0, 1), (0, 2), (1, 0), (1, 1), (0, 3), (1, 2), (1, 3)):
        a.ins("trans", f"v_exp_f32_e64 v{Pp[r]+h}, v{dd[h]+r} clamp", rd=[dd[h] + r], wr=[Pp[r] + h])
    if mid: mid()
    n01, n23 = A_ + 2, B_ + 2
    for r in range(4): pk("v_pk_add_f32", Pp[r], [Pp[r], vG8], "op_sel:[0,1] op_sel_hi:[1,1]")
    pk("v_pk_mul_f32", n01, [W4, Pp[1]], "op_sel:[0,0] op_sel_hi:[0,1]")
    pk("v_pk_mul_f32", n23, [W4 + 2, Pp[3]], "op_sel:[0,0] op_sel_hi:[0,1]")
    pk("v_pk_fma_f32", n01, [W4, Pp[0], n01], "op_sel:[1,0,0] op_sel_hi:[1,1,1]")
    pk("v_pk_fma_f32", n23, [W4 + 2, Pp[2], n23], "op_sel:[1,0,0] op_sel_hi:[1,1,1]")
    pk("v_pk_mul_f32", Pp[0], [Pp[0], Pp[1]])
    pk("v_pk_mul_f32", Pp[2], [Pp[2], Pp[3]])
    pk("v_pk_mul_f32", Pp[1], [Pp[0], Pp[2]])
    pk("v_pk_mul_f32", n01, [n01, Pp[2]])
    for i in range(2): a.valu("v_rcp_f32", Pp[1] + i, Pp[1] + i, kind="trans")
    pk("v_pk_fma_f32", n01, [n23, Pp[0], n01])
    last = Pp[1]
    if em is not None:
        pk("v_pk_fma_f32", n01, [n01, Pp[1], B2G], "op_sel:[0,0,0] op_sel_hi:[1,1,0]")
        last = em
    if second == 0:
        pk("v_pk_mul_f32", dst, [n01, last])
    else:
        pk("v_pk_mul_f32", n01, [n01, last])
        for i in range(2):
            a.valu("v_cvt_pk_bf16_f32", dst + i, (dst if second == 1 else n01) + i, n01 + i)
def Sj(j, mid=None):
    S(D1[j % 2], P[j // 2], j % 2, mid, EMP[j] if istx() else None)
def istx(): return K[0] == "G" and args.tx
def W(h):
    if istx():
        a.mfma16(B3, P[h], SELB, "0")
        a.mfma16(D2, P[h], SELA, "0")
    else:
        a.mfma16(D2, A2, P[h], C2)
def Xt():
    a.valu("v_cvt_pk_bf16_f32", B3 + 3, B3 + 2, B3 + 3)
    a.valu("v_cvt_pk_bf16_f32", B3 + 2, B3, B3 + 1)
    a.valu("v_cvt_pk_bf16_f32", B3, D2, D2 + 1)
    a.valu("v_cvt_pk_bf16_f32", B3 + 1, D2 + 2, D2 + 3)
def ocvt(js):
    for j in js:
        m = (1 << j) | (1 << (j + 16))
        a.salu(f"s_mov_b32 exec_lo, {m:#x}")
        a.salu(f"s_mov_b32 exec_hi, {m:#x}")
        a.valu("v_cvt_pk_bf16_f32", o01, D3[j], D3[j] + 1)
        a.valu("v_cvt_pk_bf16_f32", o01 + 1, D3[j] + 2, D3[j] + 3)
def T3(h):
    for i in range(2):
        j = 2 * h + i
        for u in range(2):
            if K[0] == "L": a.ds_read("ds_read_b64_tr_b16", A3[i] + 2 * u, 2, GA3 + 2 * j + u, 1600 * j)
            else: a.ds_read("ds_read_b64_tr_b16", A3[i] + 2 * u, 2, vA3, 1600 * j + 512 * u)
def rdB3(dst, j):
    o = b3off(j)
    a.ins("ds", f"ds_read2_b64 v[{dst}:{dst+3}], v{vAB3} offset0:{o} offset1:{o+8}", rd=[vAB3], wr=range(dst, dst + 4))
def X(h):
    if istx(): return Xt()
    a.valu("v_mul_f32", sc, D2, EM + h)
    a.valu("v_cvt_pk_bf16_f32", sc, sc, sc)
    a.ds_write("ds_write_b16", vAW, sc, 1, SBLK[h])
    rdB3(B3, 2 * h)
def Y(h):
    for i in range(2): a.mfma(D3[2 * h + i], A3[i], B3, "0")

def main1(CM, pi):
    G = K[0] == "G"
    if G:
        a.salu(f"s_cmp_gt_u32 s43, {args.forceslow}")
        a.salu(f"s_cbranch_scc1 L_xd{pi}")
        a.raw(f"L_xb{pi}:")
        a.m0_write = a.pos
    stamp(2)
    L(0)
    dma_upto(CM.get(6, 0))
    if not G:
        for t in range(8): gadd(GA3 + t, vC8)
    M(0)
    dma_upto(CM.get(7, 0))
    Sj(0, mid=lambda: (L(1), dma_upto(CM.get(8, 0))))
    M(1)
    dma_upto(CM.get(9, 0))
    stamp(3)
    Sj(1, mid=lambda: (L(2), T3(0), dma_upto(CM.get(10, 0))))
    M(2)
    W(0)
    dma_upto(7)
    stamp(4)
    Sj(2, mid=lambda: X(0))
    Y(0)
    L(3)
    T3(1)
    M(3)
    if args.ecv:
        ocvt((0, 1))
        a.salu("s_mov_b64 exec, -1")
    stamp(5)
    Sj(3)
    W(1)
    X(1)
    Y(1)
    assert not a.lds_q and not a.vm_q
    a.salu(f"s_cmp_gt_u32 s43, {args.forceslow}")
    a.salu(f"s_cbranch_scc1 L_slow{K[0]}")

paths = args.paths.split(";")
assert len(paths) == 4
groups = []
for sl, c in enumerate(paths):
    if not groups or groups[-1][1] != c: groups.append((sl, c))
for gi in range(len(groups) - 1, 0, -1):
    a.salu(f"s_cmp_ge_u32 s52, {groups[gi][0]}")
    a.salu(f"s_cbranch_scc1 L_path{gi}")
snap = copy.deepcopy({k: v for k, v in a.__dict__.items() if k != "lines"})
xd = []
for gi, (sl, c) in enumerate(groups):
    if gi: a.raw(f"L_path{gi}:")
    a.__dict__.update(copy.deepcopy(snap)); issued[0] = 0
    K[0] = c[0]; cfg = parse(c[1:])
    if args.eb: head1(gi)
    prologue(cfg, gi)
    if K[0] == "G": xd.append((gi, issued[0]))
    main1(cfg, gi)
    sys.stderr.write(f"path {c}: nops {a.nops} stat {a.stat}\n")
    if gi < len(groups) - 1: a.salu("s_branch L_back")
a.raw("L_back:")
a.nop(2)
if args.ecv: a.nop(2)
ocvt((2, 3) if args.ecv else (0, 1, 2, 3))
a.salu("s_mov_b32 exec_lo, 0x000f000f")
a.salu("s_mov_b32 exec_hi, 0x000f000f")
a.ins("vmemst", f"buffer_store_dwordx2 v[{o01}:{o01+1}], v{vOut}, s[28:31], s35 offen {args.stflags}", rd=[o01, o01 + 1, vOut])
if TS:
    a.raw("""    s_waitcnt vmcnt(0)
    s_memrealtime s[62:63]
    s_memtime s[92:93]
    s_lshl_b32 s66, s32, 4
    v_mov_b32 v1, s66
    s_waitcnt lgkmcnt(0)
    v_mov_b32 v4, s60
    s_sub_u32 s92, s92, s90
    v_mov_b32 v5, s92
    v_mov_b32 v6, s62
    s_lshl_b32 s95, s43, 8
    s_or_b32 s94, s94, s95
    s_getreg_b32 s95, hwreg(HW_REG_HW_ID, 8, 8)
    s_lshl_b32 s95, s95, 16
    s_or_b32 s94, s94, s95
    v_mov_b32 v7, s94
    s_mov_b64 exec, 1
    global_store_dwordx4 v1, v[4:7], s[64:65]""")
    if TS >= 2:
        a.raw("    s_lshl_b32 s66, s32, 5\n    s_add_u32 s66, s66, 0x100000\n    v_mov_b32 v1, s66")
        st = [60] + stamps + [62]
        assert len(st) == 8
        for i, r in enumerate(st):
            a.raw(f"    v_mov_b32 v{8+i}, s{r}")
        a.raw("    global_store_dwordx4 v1, v[8:11], s[64:65]\n    global_store_dwordx4 v1, v[12:15], s[64:65] offset:16")
a.raw("L_done:")
a.raw("    s_endpgm")
for gi, nis in xd:
    a.raw(f"L_xd{gi}:")
    a.lds_q = []; a.vm_q = []
    a._emit("s_waitcnt lgkmcnt(0)")
    for j in range(4):
        a.salu(f"s_cmp_le_u32 s{56+j}, {args.forceslow}")
        a.salu(f"s_cbranch_scc1 L_xs{gi}_{j}")
        a.ds_read("ds_read_b32", GX + j, 1, vEg, 256 * j + 128)
        a.salu(f"s_add_u32 m0, s36, {1600*j+1024}", swr=["m0"])
        a.salu(f"s_add_u32 s48, s33, {1600*j}")
        gadd(GX + j, vH)
        a.salu("s_mov_b32 exec_hi, 15")
        a.ins("dma", f"buffer_load_dwordx4 v{GX+j}, s[20:23], s48 offen lds", rd=[GX + j], tag="x")
        a.salu("s_mov_b32 exec_hi, -1")
        a.raw(f"L_xs{gi}_{j}:")
    a.salu(f"s_add_u32 m0, s36, {3200 if nis > 2 else 0}", swr=["m0"])
    a.raw(f"    s_branch L_xb{gi}")
for kind in sorted(set(c[0] for sl, c in groups)):
    K[0] = kind; G = kind == "G"
    a.raw(f"L_slow{kind}:")
    a.lds_q = []; a.vm_q = []
    a.nop(4)
    for j in range(4):
        a.salu(f"s_cmp_le_u32 s{56+j}, {args.forceslow}")
        a.salu(f"s_cbranch_scc1 L_sk{kind}{j}")
        if not G:
            a.ds_read("ds_read_b64", GA1, 2, vE1a, 256 * j + 128)
            a.ds_read("ds_read_b64", GA3, 2, vE3a, 256 * j + 128)
        if istx():
            for i in range(2): a.ds_read("ds_read_u16_d16_hi", EM + i, 1, vEMa, 256 * j + 2 + 128 + 64 * i)
        else:
            a.ds_read("ds_read_u16_d16_hi", EM, 1, vEMa, 256 * j + 2 + 128)
        if not G:
            for t in range(2): gadd(GA1 + t, vG8)
        for i in range(2):
            if G: a.ds_read("ds_read_b64", B1[0][i], 2, vB1, 1600 * j + 1024 + 512 * i)
            else: a.ds_read("ds_read_b64", B1[0][i], 2, GA1 + i, 1600 * j)
        if not G:
            for t in range(2): gadd(GA3 + t, vC8)
        for u in range(2):
            if G: a.ds_read("ds_read_b64_tr_b16", A3[0] + 2 * u, 2, vA3, 1600 * j + 1024 + 512 * u)
            else: a.ds_read("ds_read_b64_tr_b16", A3[0] + 2 * u, 2, GA3 + u, 1600 * j)
        for i in range(2):
            a.mfma16(D1[0][i], Aj[j], B1[0][i], Cj[j])
        if istx():
            S(D1[0], P[0], 2, None, EM)
            W(0); Xt()
        else:
            S(D1[0], P[0], 2)
            a.mfma16(D2, A2, P[0], C2)
            a.valu("v_mul_f32", sc, D2, EM)
            a.valu("v_cvt_pk_bf16_f32", sc, sc, sc)
            a.salu("s_mov_b32 exec_lo, 0xffff")
            a.salu("s_mov_b32 exec_hi, 0xffff")
            a.ds_write("ds_write_b16", vAW, sc, 1, SBLK[j >> 1] + 32 * (j & 1))
            a.salu("s_mov_b64 exec, -1")
            rdB3(B3, j)
        a.mfma(D3[j], A3[0], B3, D3[j])
        a.nop(10)
        a.raw(f"L_sk{kind}{j}:")
    if args.ecv: ocvt((0, 1))
    a.raw("    s_branch L_back")
a.raw("L_codeend:")
acc = (NVGPR + 3) // 4 * 4
a.raw(f""".section .rodata,"a"
.p2align 6
.amdhsa_kernel {NAME}
  .amdhsa_next_free_vgpr {NVGPR}
  .amdhsa_next_free_sgpr {96 if TS else 64}
  .amdhsa_accum_offset {acc}
  .amdhsa_group_segment_fixed_size 0
  .amdhsa_kernarg_size 80
  .amdhsa_user_sgpr_count 2
  .amdhsa_user_sgpr_kernarg_segment_ptr 1
  .amdhsa_system_sgpr_workgroup_id_x 1
.end_amdhsa_kernel""")
sys.stdout.write(a.text())
sys.stderr.write(f"vgpr {NVGPR} lds {LDS}\n")
```

```python
import sys, argparse, copy
from asmlib import Asm
ap = argparse.ArgumentParser()
ap.add_argument("--ts", type=int, default=0)
ap.add_argument("--forceslow", type=int, default=32)
ap.add_argument("--pst", type=int, default=0)
ap.add_argument("--stflags", type=str, default="")
ap.add_argument("--rot", type=int, default=0)
ap.add_argument("--eb", type=int, default=1)
ap.add_argument("--pf", type=int, default=0)
ap.add_argument("--ldl", type=int, default=0)
ap.add_argument("--mf", type=int, default=1)
ap.add_argument("--tx", type=int, default=0)
ap.add_argument("--iw", type=int, default=1)
ap.add_argument("--skipv", type=int, default=0)
ap.add_argument("--prio", type=int, default=0)
ap.add_argument("--ecv", type=int, default=0)
ap.add_argument("--paths", type=str, default="L1:7;G4:4;G4:4;G4:4")
args = ap.parse_args()
TS = args.ts
WPW = 4

NAME = "standalone__sequential_behavior_din__recsys_kernel"
NWG = 4096 // WPW
S_HEX = "0xbfb8aa3b"
KSH = 24
SC_F32 = (127 - KSH) << 23
SC_BF = (127 - KSH) << 7
IMG_ACS, IMG_WDS, IMG_AP, IMG_B1, IMG_W2, IMG_B2 = 0, 1024, 2048, 3072, 3136, 3200
WAVE0 = 3264
IW = args.iw
if IW:
    assert not args.tx
    IMG_B2, IMG_SEL, WAVE0 = 3264, 3328, 3456
L_OFF = 6400
SB_OFF = L_OFF + 1024
SBLK = [SB_OFF, SB_OFF + 128]
TF_OFF = SB_OFF + 256
WSZ = TF_OFF + 256
CK = (SB_OFF // 32) & ~3
def b3off(j):
    o = SBLK[j >> 1] - CK * 32
    assert o >= 0 and o % 8 == 0 and o // 8 + 8 < 256
    return o // 8
LDS = WAVE0 + WPW * WSZ
assert WAVE0 % 64 == 0 and WSZ % 64 == 0 and LDS <= 40960

a = Asm()
hdr = open("standalone__sequential_behavior_din__recsys.s.ref").read().split("; Override")[0]
a.raw(hdr.rstrip())
a.raw(f"; @launch grid=({NWG},1,1) block=({64*WPW},1,1) lds={LDS}")
a.raw('.amdgcn_target "amdgcn-amd-amdhsa--gfx950"')
a.raw(".text")
a.raw(f".globl {NAME}")
a.raw(".p2align 8")
a.raw(f".type {NAME},@function")
a.raw(f"{NAME}:")

nv = [1]
def V(n=1, al=None):
    al = al or (2 if n > 1 else 1)
    while nv[0] % al: nv[0] += 1
    r = nv[0]; nv[0] += n
    return r
vL16 = V(); vG8 = V(2); vS = vG8 + 1; vC8 = V(); vE1a = V(); vE3a = V(); vEMa = V()
vB1 = vG8; vA3 = vC8; vEg = vE1a; vH = vE3a
W4 = V(4); A2 = V(2); C2 = V(4); vAW = C2 + 1; vAB3 = C2 + 2; vOut = C2 + 3
Aj = [V(2) for _ in range(4)]
Cj = [V(4) for _ in range(4)]
D3 = [V(4), V(4), None, None]
base_tmp = nv[0]
ACS = V(4); WDS = V(4); AP = V(4); B1S = V(4)
T = [V(4) for _ in range(4)]; TM = [V(4) for _ in range(4)]
maxD1 = nv[0]
nv[0] = base_tmp
B1 = [[V(2), V(2)] for _ in range(2)]
D1 = [[V(4), V(4)] for _ in range(2)]
A3 = [V(4) for _ in range(2)]
B3 = V(4); D2 = V(4)
P = [V(2), V(2)]
tn = [V(2), V(2)]
maxE1 = nv[0]
nv[0] = max(maxD1, maxE1)
base2 = nv[0]
wa = V(4); wb = wa + 1; wc = wa + 2; wd = wa + 3
b1v = V(); w2v = V(); tv = V(); b2v = V()
vM = V(4)
vLane = V(); vL2 = V(); vL2m = V(); vT2 = V(); vN = V(); vG = V(); t0 = V(); t1 = V(); t2 = V(); t3 = V()
vPA = V(); vB16 = V(); vTg = V(); vU = V(); vRow = V(); vZ = V()
maxD2 = nv[0]
nv[0] = base2
GA1 = V(8); GA3 = V(8); EM = V(2); sc = V(); o01 = V(2)
GV = GA3; GX = GA1 if not args.tx else TM[3];
D3[2] = GA1 + 4; D3[3] = GA3 + 4
assert sc % 2 == 0 and o01 == sc + 2
EMP = [GA1, GA1 + 2, EM, sc]
SELA = A2; SELB = C2; B2G = C2 + 2
maxE2 = nv[0]
Q23 = vTg
assert vTg % 2 == 0 and (vU, vRow, vZ) == (vTg + 1, vTg + 2, vTg + 3) and vTg >= maxE2
QQ = [W4, W4 + 2, Q23, Q23 + 2]
NVGPR = max(maxD2, maxE2)
rk = [wa, wb, wc, wd]

stamps = []
def pstamp(idx):
    if args.pst: stamp(idx, True)
def stamp(idx=None, force=False):
    if args.pst and not force and stamps: return
    if TS >= 2:
        r = 68 + 2 * (len(stamps) if idx is None else idx)
        a.salu(f"s_memrealtime s[{r}:{r+1}]")
        if r not in stamps: stamps.append(r)
a.salu(f"s_cmp_ge_u32 s2, {NWG}")
a.salu("s_cbranch_scc1 L_done")
if TS:
    a.salu("s_memrealtime s[60:61]")
    a.salu("s_memtime s[90:91]")
    a.salu("s_load_dwordx2 s[64:65], s[0:1], 72")
a.salu("s_load_dwordx16 s[4:19], s[0:1], 0")
a.salu("s_getreg_b32 s52, hwreg(HW_REG_HW_ID, 0, 4)")
if TS: a.salu("s_mov_b32 s94, s52")
def head1(pi):
    a.valu("v_lshrrev_b32", t0, "6", 0)
    a.valu("v_and_b32", vLane, "63", 0)
    a.ins("rfl", f"v_readfirstlane_b32 s3, v{t0}", rd=[t0], swr=["s3"])
    if args.pf and pi == 0:
        a.salu("s_getpc_b64 s[54:55]")
        a.raw("L_pc:")
        if args.pf >= 2:
            a.salu("s_cmp_lg_u32 s3, 0")
            a.salu("s_cbranch_scc1 L_npf")
        if args.pf <= 2:
            a.valu("v_lshlrev_b32", t2, "7", vLane)
            a.valu("v_add_u32", vPA, "0x2000", t2)
            a.valu("v_min_u32", t2, "L_codeend-L_pc-4", t2)
            a.valu("v_min_u32", vPA, "L_codeend-L_pc-4", vPA)
            a._emit(f"global_load_dword v{Cj[0]}, v{t2}, s[54:55]")
            a._emit(f"global_load_dword v{Cj[0]+1}, v{vPA}, s[54:55]")
        else:
            nb = args.pf - 2
            a.salu(f"s_getreg_b32 s53, hwreg(HW_REG_HW_ID, 8, {nb})")
            a.salu(f"s_lshl_b32 s53, s53, {14 - nb}")
            a.valu("v_lshl_add_u32", t2, vLane, "7", "s53")
            a.valu("v_min_u32", t2, "L_codeend-L_pc-4", t2)
            if nb == 2: a.salu("s_mov_b32 exec_hi, 0")
            a._emit(f"global_load_dword v{Cj[0]}, v{t2}, s[54:55]")
            if nb == 2: a.salu("s_mov_b32 exec_hi, -1")
        a.raw("L_npf:")
    a.valu("v_add_u32", vT2, 0, 0)
    a.valu("v_add_u32", vL2, vLane, vLane)
    a.valu("v_add_u32", vL2m, vLane, vLane)
    a.valu("v_lshlrev_b32", vL16, "4", vLane)
    a.valu("v_and_b32", vN, "15", vLane)
    a.valu("v_lshrrev_b32", vG, "4", vLane)
    a.valu("v_mov_b32", t3, "0")
    a.valu("v_add_u32", t1, vN, vN)
    a.salu(f"s_mul_i32 s36, s3, {WSZ}")
    a.salu(f"s_add_u32 s36, s36, {WAVE0}")
    a.salu(f"s_mul_i32 s32, s2, {WPW}")
    a.salu("s_add_u32 s32, s32, s3")
    a.salu("s_mul_i32 s33, s32, 6400")
    a.salu("s_mul_i32 s34, s32, 400")
    a.salu("s_lshl_b32 s35, s32, 7")
    a.salu(f"s_add_u32 s41, s36, {L_OFF}")
    a.salu("s_mov_b32 s40, s41")
    a.salu(f"s_mov_b32 s37, {S_HEX}")
    a.salu("s_mov_b32 s22, %d" % (16384 * 1600))
    a.salu("s_mov_b32 s23, 0x20000")
    a.salu("s_mov_b32 s26, %d" % (16384 * 100))
    a.salu("s_mov_b32 s27, 0x20000")
    a.salu("s_mov_b32 s30, %d" % (16384 * 32))
    a.salu("s_mov_b32 s31, 0x20000")
    a.salu("s_mov_b32 s46, %d" % (16384 * 32))
    a.salu("s_mov_b32 s47, 0x20000")
    a.salu("s_mov_b32 m0, s36", swr=["m0"])
    if args.rot:
        a.salu("s_lshr_b32 s42, s2, 3")
        a.salu("s_add_u32 s42, s42, s3")
        a.salu("s_and_b32 s42, s42, 3")
    else:
        a.salu("s_mov_b32 s42, s3")
    a.valu("v_add_u32", vRow, vL16, vL16)
    a.salu("s_mov_b32 exec_lo, 0")
    a.salu("s_mov_b32 exec_hi, 0xfffc0000")
    a.valu("v_mov_b32", vL2m, "0x7ff00000")
    a.valu("v_mov_b32", vRow, str(49 * 32))
    a.salu("s_mov_b64 exec, -1")
    a._emit("s_waitcnt lgkmcnt(0)")
    stamp(0, True)


if not args.eb: head1(0)
K = ["L"]
issued = [0]
def dma(k):
    if K[0] == "L":
        if k == 4: a.salu("s_add_u32 m0, s36, 4096", swr=["m0"])
        if k == 6: a.salu("s_mov_b64 exec, 0xffff")
        so = "s33" if k < 4 else "s38"
        off = (k % 4) * 1024
        a.ins("dma", f"buffer_load_dwordx4 v{vL16}, s[20:23], {so} offen" + (f" offset:{off}" if off else "") + " lds", rd=[vL16], tag=f"h{k}")
        if k == 6: a.salu("s_mov_b64 exec, -1")
    else:
        if k == 2: a.salu("s_add_u32 m0, s36, 3200", swr=["m0"])
        so = "s33" if k < 2 else "s38"
        off = (k % 2) * 1600
        a.ins("dma", f"buffer_load_dwordx4 v{GV+k}, s[20:23], {so} offen" + (f" offset:{off}" if off else "") + " lds", rd=[GV + k], tag=f"h{k}")
def dma_upto(n):
    while issued[0] < min(n, 7 if K[0] == "L" else 4):
        dma(issued[0]); issued[0] += 1
def add64(r, off, sh=0):
    a.ins("valu", f"v_lshl_add_u64 v[{r}:{r+1}], v[{r}:{r+1}], {sh}, {off}", rd=[r, r + 1], wr=[r, r + 1])
def gadd(q, off):
    a.ins("valu", f"v_add_u32_sdwa v{q}, v{q}, v{off} dst_sel:DWORD dst_unused:UNUSED_PAD src0_sel:WORD_0 src1_sel:DWORD", rd=[q, off], wr=[q])
def pk(op, dst, srcs, mod=""):
    rd = [r + k for r in srcs if isinstance(r, int) for k in range(2)]
    a.ins("valu", f"{op} v[{dst}:{dst+1}], " + ", ".join(f"v[{r}:{r+1}]" if isinstance(r, int) else r for r in srcs) + (" " + mod if mod else ""), rd=rd, wr=[dst, dst + 1])

def prologue(cfg, pi):
    G = K[0] == "G"
    early = (lambda p: None) if G else (lambda p: dma_upto(cfg.get(p, 0)))
    if IW == 2:
        assert TS < 2
        a.salu("s_load_dwordx8 s[72:79], s[14:15], 0")
    a.salu("s_mov_b32 s20, s6")
    a.salu("s_and_b32 s21, s7, 0xffff")
    a.salu(f"s_add_u32 s38, s33, {3200 if G else 4096}")
    early(-1)
    a.salu("s_cmp_lg_u32 s42, 0")
    a.salu(f"s_cbranch_scc1 L_nb{pi}")
    a.ins("vmem", f"global_load_short_d16_hi v{b2v}, v{t3}, s[16:17]", rd=[t3], wr=[b2v])
    a.ins("vmem", f"global_load_short_d16_hi v{b1v}, v{t1}, s[12:13]", rd=[t1], wr=[b1v])
    a.ins("vmem", f"global_load_short_d16_hi v{w2v}, v{t1}, s[14:15]", rd=[t1], wr=[w2v])
    a.raw(f"L_nb{pi}:")
    def ld_w():
        for i, r in enumerate((wa, wb, wc, wd)):
            a.ins("vmem", f"global_load_short_d16_hi v{r}, v{vT2}, s[10:11]" + (f" offset:{512*i}" if i else ""), rd=[vT2], wr=[r])
        a.salu("s_mov_b32 s44, s4")
        a.salu("s_and_b32 s45, s5, 0xffff")
        a.ins("vmem", f"buffer_load_short_d16_hi v{tv}, v{vL2}, s[44:47], s35 offen", rd=[vL2], wr=[tv])
    def ld_m():
        a.salu("s_mov_b32 s24, s8")
        a.salu("s_and_b32 s25, s9, 0xffff")
        for j in range(4):
            a.ins("vmem", f"buffer_load_short_d16_hi v{vM+j}, v{vL2m}, s[24:27], s34 offen" + (f" offset:{100*j}" if j else ""), rd=[vL2m], wr=[vM + j])
    mf = G and args.mf
    ec = mf and cfg.get(2, 0) > 0
    if mf: ld_m(); ld_w()
    else: ld_w(); ld_m()
    pstamp(1)
    early(0)
    a.salu("s_mov_b32 s28, s18")
    a.salu("s_and_b32 s29, s19, 0xffff")
    a.salu("s_mov_b32 s39, 0xffff")
    a.salu("s_lshl_b32 s49, s3, 8")
    a.salu(f"s_mov_b32 s56, {SC_BF:#x}")
    a.salu("s_mov_b32 s57, 0")
    a.valu("v_sub_u32", vZ, "63", vLane)
    a.valu("v_lshlrev_b32", t0, "3", vG)
    a.valu("v_lshl_add_u32", vOut, vN, "5", t0)
    a.valu("v_add_u32", vB16, t0, t0)
    a.valu("v_add_u32", vTg, "s36", vB16)
    if not IW: a.valu("v_mov_b32", vS, f"{SC_F32:#x}")
    TX = G and args.tx
    if TX:
        a.valu("v_lshl_add_u32", vU, vLane, "2", "s36")
        a.valu("v_lshlrev_b32", SELA, vL16, "s56")
        a.valu("v_mov_b32", SELA + 1, "0")
        a.valu("v_mov_b32", SELB, "0")
        a.valu("v_mov_b32", SELB + 1, SELA)
    else:
        a.valu("v_add_u32", vAW, "s36", vL2)
        a.valu("v_add_u32", vU, vAW, vL2)
        if not IW: a.ins("valu", f"v_lshlrev_b64 v[{A2}:{A2+1}], v{vU}, s[56:57]", rd=[vU], wr=[A2, A2 + 1])
        a.salu(f"s_add_u32 s50, s36, {CK*32}")
        a.valu("v_and_b32", t3, "0x38", vOut)
        a.valu("v_add_u32", vAB3, "s50", t3)
    if not G:
        a.valu("v_add_u32", vG8, "s36", t0)
        a.valu("v_and_b32", t3, "3", vLane)
        a.valu("v_lshl_add_u32", vC8, t3, "3", "s36")
        a.valu("v_lshl_add_u32", vE1a, vN, "3", "s41")
        a.valu("v_and_b32", t3, "0x78", vL2)
        a.valu("v_add_u32", vE3a, "s41", t3)
        a.valu("v_lshrrev_b32", t3, "5", vLane)
        a.valu("v_lshl_add_u32", vEMa, t3, "2", vE1a)
        a.valu("v_and_b32", t3, "16", vLane)
        a.valu("v_lshl_add_u32", vEMa, t3, "4", vEMa)
    else:
        a.valu("v_and_b32", t3, "16", vL2)
        a.valu("v_xad_u32", vB1, vOut, t3, "s36")
        a.valu("v_lshrrev_b32", t3, "1", vLane)
        a.valu("v_lshl_add_u32", vEg, t3, "2", "s41")
        a.valu("v_and_b32", t3, "16", t3)
        a.valu("v_lshrrev_b32", t0, "1", vL16)
        a.valu("v_xad_u32", vA3, t0, t3, "s36")
        a.valu("v_xor_b32", vH, vL16, vLane)
        a.valu("v_and_b32", vH, "16", vH)
        if TX:
            a.valu("v_lshl_add_u32", vEMa, vN, "2", "s41")
        else:
            a.valu("v_lshl_add_u32", vEMa, t3, "2", "s41")
            a.valu("v_lshl_add_u32", vEMa, vN, "2", vEMa)
            a.valu("v_and_b32", t3, "16", vLane)
            a.valu("v_lshl_add_u32", vEMa, t3, "4", vEMa)
    rk = [T[0], T[0] + 1, T[0] + 2, T[0] + 3] if ec else [wa, wb, wc, wd]
    def compaction():
        for j in range(4):
            a.ins("valu", f"v_cmp_lt_u32 s[{48+2*j}:{49+2*j}], s39, v{vM+j}", rd=[vM + j], swr=[f"s{48+2*j}", f"s{49+2*j}"])
        for j in range(4): a.valu("v_or_b32", vM + j, vRow, vM + j)
        for j in range(4): a.valu("v_cndmask_b32", rk[j], vZ, "0", f"s[{48+2*j}:{49+2*j}]")
        for j in range(4): a.valu("v_mbcnt_lo_u32_b32", rk[j], f"s{48+2*j}", rk[j])
        for j in range(4): a.valu("v_mbcnt_hi_u32_b32", rk[j], f"s{49+2*j}", rk[j])
        for j in (0, 2): add64(rk[j], "s[40:41]", 2)
        for j in range(4): a.ds_write("ds_write_b32", rk[j], vM + j, 1, 256 * j)
        for j in range(4):
            a.salu(f"s_bcnt1_i32_b64 s{56+j}, s[{48+2*j}:{49+2*j}]")
        a.salu("s_max_u32 s43, s56, s57")
        a.salu("s_max_u32 s48, s58, s59")
        a.salu("s_max_u32 s43, s43, s48")
    def gv_read():
        for j in (0, 2):
            a.ins("ds", f"ds_read2st64_b32 v[{GV+j}:{GV+j+1}], v{vEg} offset0:{j} offset1:{j+1}", rd=[vEg], wr=[GV + j, GV + j + 1])
    def gv_issue(n):
        for j in range(4): gadd(GV + j, vH)
        dma_upto(n)
    a.valu("v_lshl_add_u32", t3, vN, "4", "s49")
    a.valu("v_lshl_add_u32", vPA, vG, "2", t3)
    if IW == 2:
        a.valu("v_lshlrev_b32", t2, "2", vN)
        a.valu("v_and_b32", t0, "2", vN)
        a.valu("v_lshlrev_b32", t0, "5", t0)
        a.valu("v_and_b32", t3, "12", vN)
        a.valu("v_lshl_add_u32", t0, t3, "2", t0)
        a.valu("v_and_b32", t3, "1", vN)
        a.valu("v_lshl_add_u32", t0, t3, "3", t0)
        a._emit("s_waitcnt lgkmcnt(0)")
        for i in range(8): a.salu(f"s_and_b32 s{4+i}, s{72+i}, 0x7f807f80")
        for i in range(8): a.salu(f"s_lshl_b32 s{12+i}, s{4+i}, 16")
        for st in (8, 4, 2, 1):
            for i in range(st): a.salu(f"s_max_u32 s{4+i}, s{4+i}, s{4+st+i}")
        a.salu("s_and_b32 s4, s4, 0x7f800000")
        a.salu(f"s_max_u32 s4, s4, {(KSH + 1) << 23:#x}")
        a.salu(f"s_min_u32 s4, s4, {253 << 23:#x}")
        a.salu(f"s_sub_u32 s5, {254 << 23:#x}, s4")
        a.salu("s_lshr_b32 s56, s4, 16")
        a.salu(f"s_sub_u32 s56, s56, {KSH << 7:#x}")
        a.salu("s_mov_b32 s6, 0x7fffffff")
        a.salu(f"s_mov_b32 s7, {(127 - 28) << 23:#x}")
        a.salu("s_mov_b32 s8, 0xc1c00000")
        a.ins("valu", f"v_lshlrev_b64 v[{A2}:{A2+1}], v{vU}, s[56:57]", rd=[vU], wr=[A2, A2 + 1])
    if not G and args.ldl:
        for _ in range(args.ldl): a.salu("s_nop 15")
    if cfg.get(99): a.salu(f"s_sleep {cfg[99]}")
    early(1)
    pstamp(2)
    if ec:
        compaction(); gv_read()
        pstamp(3)
        gv_issue(cfg[2])
    a.valu("v_add_f32", wa, wa, wc)
    if not ec: pstamp(3)
    a.valu("v_sub_f32", wb, wb, wc)
    a.valu("v_mul_f32", wa, "s37", wa)
    a.valu("v_mul_f32", wb, "s37", wb)
    a.valu("v_mul_f32", wd, "s37", wd)
    a.ds_write("ds_write_b32", vPA, wa, 1, IMG_ACS)
    a.valu("v_cvt_pk_bf16_f32", t1, wb, wb)
    a.ds_write("ds_write_b32", vPA, wd, 1, IMG_WDS)
    a.ds_write("ds_write_b32", vPA, t1, 1, IMG_AP)
    a.salu("s_cmp_lg_u32 s42, 0")
    a.salu(f"s_cbranch_scc1 L_np{pi}")
    if IW == 2:
        qs, q0 = TM[0], TM[1]
        a.valu("v_mul_f32", w2v, "s5", w2v)
        a.valu("v_mul_f32", b1v, "s37", b1v)
        a.ins("valu", f"v_max_f32_e64 v{qs}, |v{w2v}|, s7", rd=[w2v], wr=[qs])
        a.valu("v_bfi_b32", qs, "s6", qs, w2v)
        a.valu("v_rcp_f32", q0, qs, kind="trans")
        a.valu("v_add_f32", b1v, "s8", b1v)
        a.valu("v_mul_f32", q0 + 1, f"{SC_F32:#x}", q0)
    else:
        a.valu("v_mov_b32", t0, "0xc1c00000")
        a.valu("v_lshlrev_b32", t2, "2", vN)
        a.valu("v_fma_f32", b1v, b1v, "s37", t0)
    if IW == 1:
        qe, qs, q0, q1 = TM[0], TM[0] + 1, TM[1], TM[1] + 2
        a.valu("v_and_b32", qe, "0x7f800000", w2v)
        for rr in (8, 4, 2, 1):
            a.nop(2)
            a.ins("valu", f"v_max_u32_dpp v{qe}, v{qe}, v{qe} row_ror:{rr} row_mask:0xf bank_mask:0xf", rd=[qe], wr=[qe])
        a.valu("v_max_u32", qe, f"{(KSH + 1) << 23:#x}", qe)
        a.valu("v_min_u32", qe, f"{253 << 23:#x}", qe)
        a.valu("v_sub_u32", qs, f"{254 << 23:#x}", qe)
        a.valu("v_mul_f32", w2v, w2v, qs)
        a.valu("v_mov_b32", t0, f"{(127 - 28) << 23:#x}")
        a.ins("valu", f"v_max_f32_e64 v{qs}, |v{w2v}|, v{t0}", rd=[w2v, t0], wr=[qs])
        a.salu("s_mov_b32 s51, 0x7fffffff" if not ec else "s_mov_b32 s49, 0x7fffffff")
        a.valu("v_bfi_b32", qs, "s51" if not ec else "s49", qs, w2v)
        a.valu("v_rcp_f32", q0, qs, kind="trans")
        a.valu("v_lshrrev_b32", q1, "16", qe)
        a.valu("v_mul_f32", q0 + 1, f"{SC_F32:#x}", q0)
        a.valu("v_subrev_u32", q1, f"{KSH << 7:#x}", q1)
        a.valu("v_mov_b32", q1 + 1, "0")
        a.valu("v_and_b32", t0, "2", vN)
        a.valu("v_lshlrev_b32", t0, "5", t0)
        a.valu("v_and_b32", t3, "12", vN)
        a.valu("v_lshl_add_u32", t0, t3, "2", t0)
        a.valu("v_and_b32", t3, "1", vN)
        a.valu("v_lshl_add_u32", t0, t3, "3", t0)
        a.valu("v_add_u32", t3, t2, t2)
    a.salu("s_mov_b64 exec, 0xffff")
    a.ds_write("ds_write_b32", t2, b1v, 1, IMG_B1)
    if IW:
        a.ds_write("ds_write_b64", t0, q0, 2, IMG_W2)
        if IW == 1: a.ds_write("ds_write_b64", t3, q1, 2, IMG_SEL)
    else:
        a.ds_write("ds_write_b32", t2, w2v, 1, IMG_W2)
    a.ds_write("ds_write_b32", t2, b2v, 1, IMG_B2)
    a.salu("s_mov_b64 exec, -1")
    a.raw(f"L_np{pi}:")
    early(2)
    a.ds_write("ds_write_b32", vU, tv, 1, TF_OFF)
    pre = G and cfg.get(2, 0) > 0
    if pre and not ec:
        compaction(); gv_read(); gv_issue(cfg[2])
    a.wait_lds_all()
    stamp(1)
    pstamp(4)
    a._emit("s_barrier")
    pstamp(5)
    for j in range(2):
        a.ds_read("ds_read_b128", T[j], 4, vTg, TF_OFF + 64 * j)
    a.ds_read("ds_read_b128", ACS, 4, vL16, IMG_ACS)
    a.ds_read("ds_read_b128", WDS, 4, vL16, IMG_WDS)
    for j in range(2, 4):
        a.ds_read("ds_read_b128", T[j], 4, vTg, TF_OFF + 64 * j)
    a.ds_read("ds_read_b128", AP, 4, vL16, IMG_AP)
    a.ds_read("ds_read_b128", B1S, 4, vB16, IMG_B1)
    a.ds_read("ds_read_b128", W4, 4, vB16, IMG_W2)
    a.ds_read("ds_read_b32", B2G if TX else C2, 1, vB16, IMG_B2)
    if IW == 1: a.ds_read("ds_read_b64", A2, 2, vB16, IMG_SEL)
    early(3)
    if not pre:
        compaction()
        early(4)
        if G: gv_read()
    if not G:
        for j in range(4):
            a.ds_read("ds_read_b64", GA1 + 2 * j, 2, vE1a, 256 * j)
    for j in range(4):
        for k in (0, 2): pk("v_pk_fma_f32", TM[j] + k, [T[j] + k, WDS + k, ACS + k])
    if G and not pre: gv_issue(cfg.get(4, 0))
    if pre: dma_upto(cfg.get(4, 0))
    if not G:
        for j in range(4):
            a.ds_read("ds_read_b64", GA3 + 2 * j, 2, vE3a, 256 * j)
    if TX:
        for j in range(4):
            for i in range(2): a.ds_read("ds_read_u16_d16_hi", EMP[j] + i, 1, vEMa, 256 * j + 64 * i + 2)
        a.valu("v_mul_f32", B2G, f"{(127 + KSH - 2) << 23:#x}", B2G)
    else:
        for h in range(2):
            a.ds_read("ds_read_u16_d16_hi", EM + h, 1, vEMa, 512 * h + 2)
    if IW:
        if IW == 1: a.ins("valu", f"v_lshlrev_b64 v[{A2}:{A2+1}], v{vU}, v[{A2}:{A2+1}]", rd=[vU, A2, A2 + 1], wr=[A2, A2 + 1])
        a.ds_read("ds_read_b128", Q23, 4, vB16, IMG_W2 + 64)
    for j in range(4):
        a.mfma(Cj[j], AP, T[j], B1S)
    for j in range(4):
        a.valu("v_cvt_pk_bf16_f32", Aj[j], TM[j], TM[j] + 1)
        a.valu("v_cvt_pk_bf16_f32", Aj[j] + 1, TM[j] + 2, TM[j] + 3)
    if not G:
        for t in range(8): gadd(GA1 + t, vG8)
    dma_upto(max(cfg.get(5, 0), 1 if G else 2))

def parse(c): return {int(x.split(":")[0]): int(x.split(":")[1]) for x in c.split(",") if x}
def need(j): return {0: 1, 1: 3, 2: 4, 3: 6}[j] if K[0] == "L" else j
def L(j):
    dma_upto(need(j) + 1)
    a.wait_vm_for(tag=f"h{need(j)}")
    for i in range(2):
        if K[0] == "L": a.ds_read("ds_read_b64", B1[j % 2][i], 2, GA1 + 2 * j + i, 1600 * j)
        else: a.ds_read("ds_read_b64", B1[j % 2][i], 2, vB1, 1600 * j + 512 * i)
def M(j):
    for i in range(2):
        a.mfma16(D1[j % 2][i], Aj[j], B1[j % 2][i], Cj[j])
def S(dd, dst, second, mid=None, em=None):
    A_, B_ = dd
    u = tn[0]; assert tn[1] == u + 2
    Pp = [u, u + 2, A_, B_]
    for (h, r) in ((0, 0), (0, 1), (0, 2), (1, 0), (1, 1), (0, 3), (1, 2), (1, 3))[:4 if args.skipv & 2 else 8]:
        a.ins("trans", f"v_exp_f32_e64 v{Pp[r]+h}, v{dd[h]+r} clamp", rd=[dd[h] + r], wr=[Pp[r] + h])
    if mid: mid()
    n01, n23 = A_ + 2, B_ + 2
    if IW:
        for r in range(4): pk("v_pk_fma_f32", Pp[r], [Pp[r], QQ[r], QQ[r]], "op_sel:[0,0,1] op_sel_hi:[1,0,1]")
        pk("v_pk_mul_f32", n23, [Pp[0], Pp[1]])
        pk("v_pk_add_f32", n01, [Pp[0], Pp[1]])
        pk("v_pk_mul_f32", Pp[0], [n23, Pp[2]])
        pk("v_pk_fma_f32", n01, [n01, Pp[2], n23])
        pk("v_pk_mul_f32", Pp[1], [Pp[0], Pp[3]])
        for i in range(2): a.valu("v_rcp_f32", Pp[1] + i, Pp[1] + i, kind="trans")
        pk("v_pk_fma_f32", n01, [n01, Pp[3], Pp[0]])
    else:
        if not args.skipv & 1:
            for r in range(4): pk("v_pk_add_f32", Pp[r], [Pp[r], vG8], "op_sel:[0,1] op_sel_hi:[1,1]")
        pk("v_pk_mul_f32", n01, [W4, Pp[1]], "op_sel:[0,0] op_sel_hi:[0,1]")
        pk("v_pk_mul_f32", n23, [W4 + 2, Pp[3]], "op_sel:[0,0] op_sel_hi:[0,1]")
        pk("v_pk_fma_f32", n01, [W4, Pp[0], n01], "op_sel:[1,0,0] op_sel_hi:[1,1,1]")
        pk("v_pk_fma_f32", n23, [W4 + 2, Pp[2], n23], "op_sel:[1,0,0] op_sel_hi:[1,1,1]")
        pk("v_pk_mul_f32", Pp[0], [Pp[0], Pp[1]])
        pk("v_pk_mul_f32", Pp[2], [Pp[2], Pp[3]])
        pk("v_pk_mul_f32", Pp[1], [Pp[0], Pp[2]])
        pk("v_pk_mul_f32", n01, [n01, Pp[2]])
        for i in range(2): a.valu("v_rcp_f32", Pp[1] + i, Pp[1] + i, kind="trans")
        pk("v_pk_fma_f32", n01, [n23, Pp[0], n01])
    last = Pp[1]
    if em is not None:
        pk("v_pk_fma_f32", n01, [n01, Pp[1], B2G], "op_sel:[0,0,0] op_sel_hi:[1,1,0]")
        last = em
    if second == 0:
        pk("v_pk_mul_f32", dst, [n01, last])
    else:
        pk("v_pk_mul_f32", n01, [n01, last])
        for i in range(2):
            a.valu("v_cvt_pk_bf16_f32", dst + i, (dst if second == 1 else n01) + i, n01 + i)
def Sj(j, mid=None):
    S(D1[j % 2], P[j // 2], j % 2, mid, EMP[j] if istx() else None)
def istx(): return K[0] == "G" and args.tx
def W(h):
    if istx():
        a.mfma16(B3, P[h], SELB, "0")
        a.mfma16(D2, P[h], SELA, "0")
    else:
        a.mfma16(D2, A2, P[h], C2)
def Xt():
    a.valu("v_cvt_pk_bf16_f32", B3 + 3, B3 + 2, B3 + 3)
    a.valu("v_cvt_pk_bf16_f32", B3 + 2, B3, B3 + 1)
    a.valu("v_cvt_pk_bf16_f32", B3, D2, D2 + 1)
    a.valu("v_cvt_pk_bf16_f32", B3 + 1, D2 + 2, D2 + 3)
def ocvt(js):
    for j in js:
        m = (1 << j) | (1 << (j + 16))
        a.salu(f"s_mov_b32 exec_lo, {m:#x}")
        a.salu(f"s_mov_b32 exec_hi, {m:#x}")
        a.valu("v_cvt_pk_bf16_f32", o01, D3[j], D3[j] + 1)
        a.valu("v_cvt_pk_bf16_f32", o01 + 1, D3[j] + 2, D3[j] + 3)
def T3(h):
    for i in range(2):
        j = 2 * h + i
        for u in range(2):
            if K[0] == "L": a.ds_read("ds_read_b64_tr_b16", A3[i] + 2 * u, 2, GA3 + 2 * j + u, 1600 * j)
            else: a.ds_read("ds_read_b64_tr_b16", A3[i] + 2 * u, 2, vA3, 1600 * j + 512 * u)
def rdB3(dst, j):
    o = b3off(j)
    a.ins("ds", f"ds_read2_b64 v[{dst}:{dst+3}], v{vAB3} offset0:{o} offset1:{o+8}", rd=[vAB3], wr=range(dst, dst + 4))
def X(h):
    if istx(): return Xt()
    a.valu("v_mul_f32", sc, D2, EM + h)
    a.valu("v_cvt_pk_bf16_f32", sc, sc, sc)
    a.ds_write("ds_write_b16", vAW, sc, 1, SBLK[h])
    rdB3(B3, 2 * h)
def Y(h):
    for i in range(2): a.mfma(D3[2 * h + i], A3[i], B3, "0")

def main1(CM, pi):
    G = K[0] == "G"
    if G:
        a.salu(f"s_cmp_gt_u32 s43, {args.forceslow}")
        a.salu(f"s_cbranch_scc1 L_xd{pi}")
        a.raw(f"L_xb{pi}:")
        a.m0_write = a.pos
    stamp(2)
    L(0)
    dma_upto(CM.get(6, 0))
    if not G:
        for t in range(8): gadd(GA3 + t, vC8)
    M(0)
    dma_upto(CM.get(7, 0))
    Sj(0, mid=lambda: (L(1), dma_upto(CM.get(8, 0))))
    M(1)
    dma_upto(CM.get(9, 0))
    stamp(3)
    Sj(1, mid=lambda: (L(2), T3(0), dma_upto(CM.get(10, 0))))
    M(2)
    W(0)
    dma_upto(7)
    if args.prio == 2 and G: a.salu("s_setprio 0")
    stamp(4)
    Sj(2, mid=lambda: X(0))
    Y(0)
    L(3)
    T3(1)
    M(3)
    if args.ecv:
        ocvt((0, 1))
        a.salu("s_mov_b64 exec, -1")
    stamp(5)
    Sj(3)
    W(1)
    X(1)
    Y(1)
    assert not a.lds_q and not a.vm_q
    a.salu(f"s_cmp_gt_u32 s43, {args.forceslow}")
    a.salu(f"s_cbranch_scc1 L_slow{K[0]}")

paths = args.paths.split(";")
assert len(paths) == 4
groups = []
for sl, c in enumerate(paths):
    if not groups or groups[-1][1] != c: groups.append((sl, c))
for gi in range(len(groups) - 1, 0, -1):
    a.salu(f"s_cmp_ge_u32 s52, {groups[gi][0]}")
    a.salu(f"s_cbranch_scc1 L_path{gi}")
snap = copy.deepcopy({k: v for k, v in a.__dict__.items() if k != "lines"})
xd = []
for gi, (sl, c) in enumerate(groups):
    if gi: a.raw(f"L_path{gi}:")
    a.__dict__.update(copy.deepcopy(snap)); issued[0] = 0
    K[0] = c[0]; cfg = parse(c[1:])
    if args.prio and K[0] == "G": a.salu("s_setprio 3")
    if args.prio == 4 and K[0] == "L": a.salu("s_setprio 3")
    if args.eb: head1(gi)
    prologue(cfg, gi)
    if args.prio in (1, 4): a.salu("s_setprio 0")
    if args.prio == 3 and K[0] == "G": a.salu(f"s_setprio {gi}")
    if K[0] == "G": xd.append((gi, issued[0]))
    main1(cfg, gi)
    sys.stderr.write(f"path {c}: nops {a.nops} stat {a.stat}\n")
    if gi < len(groups) - 1: a.salu("s_branch L_back")
a.raw("L_back:")
a.nop(2)
if args.ecv: a.nop(2)
ocvt((2, 3) if args.ecv else (0, 1, 2, 3))
a.salu("s_mov_b32 exec_lo, 0x000f000f")
a.salu("s_mov_b32 exec_hi, 0x000f000f")
a.ins("vmemst", f"buffer_store_dwordx2 v[{o01}:{o01+1}], v{vOut}, s[28:31], s35 offen {args.stflags}", rd=[o01, o01 + 1, vOut])
if TS:
    a.raw("""    s_waitcnt vmcnt(0)
    s_memrealtime s[62:63]
    s_memtime s[92:93]
    s_lshl_b32 s66, s32, 4
    v_mov_b32 v1, s66
    s_waitcnt lgkmcnt(0)
    v_mov_b32 v4, s60
    s_sub_u32 s92, s92, s90
    v_mov_b32 v5, s92
    v_mov_b32 v6, s62
    s_lshl_b32 s95, s43, 8
    s_or_b32 s94, s94, s95
    s_getreg_b32 s95, hwreg(HW_REG_HW_ID, 8, 8)
    s_lshl_b32 s95, s95, 16
    s_or_b32 s94, s94, s95
    v_mov_b32 v7, s94
    s_mov_b64 exec, 1
    global_store_dwordx4 v1, v[4:7], s[64:65]""")
    if TS >= 2:
        a.raw("    s_lshl_b32 s66, s32, 5\n    s_add_u32 s66, s66, 0x100000\n    v_mov_b32 v1, s66")
        st = [60] + stamps + [62]
        assert len(st) == 8
        for i, r in enumerate(st):
            a.raw(f"    v_mov_b32 v{8+i}, s{r}")
        a.raw("    global_store_dwordx4 v1, v[8:11], s[64:65]\n    global_store_dwordx4 v1, v[12:15], s[64:65] offset:16")
a.raw("L_done:")
a.raw("    s_endpgm")
for gi, nis in xd:
    a.raw(f"L_xd{gi}:")
    a.lds_q = []; a.vm_q = []
    a._emit("s_waitcnt lgkmcnt(0)")
    for j in range(4):
        a.salu(f"s_cmp_le_u32 s{56+j}, {args.forceslow}")
        a.salu(f"s_cbranch_scc1 L_xs{gi}_{j}")
        a.ds_read("ds_read_b32", GX + j, 1, vEg, 256 * j + 128)
        a.salu(f"s_add_u32 m0, s36, {1600*j+1024}", swr=["m0"])
        a.salu(f"s_add_u32 s48, s33, {1600*j}")
        gadd(GX + j, vH)
        a.salu("s_mov_b32 exec_hi, 15")
        a.ins("dma", f"buffer_load_dwordx4 v{GX+j}, s[20:23], s48 offen lds", rd=[GX + j], tag="x")
        a.salu("s_mov_b32 exec_hi, -1")
        a.raw(f"L_xs{gi}_{j}:")
    a.salu(f"s_add_u32 m0, s36, {3200 if nis > 2 else 0}", swr=["m0"])
    a.raw(f"    s_branch L_xb{gi}")
for kind in sorted(set(c[0] for sl, c in groups)):
    K[0] = kind; G = kind == "G"
    a.raw(f"L_slow{kind}:")
    a.lds_q = []; a.vm_q = []
    a.nop(4)
    for j in range(4):
        a.salu(f"s_cmp_le_u32 s{56+j}, {args.forceslow}")
        a.salu(f"s_cbranch_scc1 L_sk{kind}{j}")
        if not G:
            a.ds_read("ds_read_b64", GA1, 2, vE1a, 256 * j + 128)
            a.ds_read("ds_read_b64", GA3, 2, vE3a, 256 * j + 128)
        if istx():
            for i in range(2): a.ds_read("ds_read_u16_d16_hi", EM + i, 1, vEMa, 256 * j + 2 + 128 + 64 * i)
        else:
            a.ds_read("ds_read_u16_d16_hi", EM, 1, vEMa, 256 * j + 2 + 128)
        if not G:
            for t in range(2): gadd(GA1 + t, vG8)
        for i in range(2):
            if G: a.ds_read("ds_read_b64", B1[0][i], 2, vB1, 1600 * j + 1024 + 512 * i)
            else: a.ds_read("ds_read_b64", B1[0][i], 2, GA1 + i, 1600 * j)
        if not G:
            for t in range(2): gadd(GA3 + t, vC8)
        for u in range(2):
            if G: a.ds_read("ds_read_b64_tr_b16", A3[0] + 2 * u, 2, vA3, 1600 * j + 1024 + 512 * u)
            else: a.ds_read("ds_read_b64_tr_b16", A3[0] + 2 * u, 2, GA3 + u, 1600 * j)
        for i in range(2):
            a.mfma16(D1[0][i], Aj[j], B1[0][i], Cj[j])
        if istx():
            S(D1[0], P[0], 2, None, EM)
            W(0); Xt()
        else:
            S(D1[0], P[0], 2)
            a.mfma16(D2, A2, P[0], C2)
            a.valu("v_mul_f32", sc, D2, EM)
            a.valu("v_cvt_pk_bf16_f32", sc, sc, sc)
            a.salu("s_mov_b32 exec_lo, 0xffff")
            a.salu("s_mov_b32 exec_hi, 0xffff")
            a.ds_write("ds_write_b16", vAW, sc, 1, SBLK[j >> 1] + 32 * (j & 1))
            a.salu("s_mov_b64 exec, -1")
            rdB3(B3, j)
        a.mfma(D3[j], A3[0], B3, D3[j])
        a.nop(10)
        a.raw(f"L_sk{kind}{j}:")
    if args.ecv: ocvt((0, 1))
    a.raw("    s_branch L_back")
a.raw("L_codeend:")
acc = (NVGPR + 3) // 4 * 4
a.raw(f""".section .rodata,"a"
.p2align 6
.amdhsa_kernel {NAME}
  .amdhsa_next_free_vgpr {NVGPR}
  .amdhsa_next_free_sgpr {96 if TS else (80 if IW == 2 else 64)}
  .amdhsa_accum_offset {acc}
  .amdhsa_group_segment_fixed_size 0
  .amdhsa_kernarg_size 80
  .amdhsa_user_sgpr_count 2
  .amdhsa_user_sgpr_kernarg_segment_ptr 1
  .amdhsa_system_sgpr_workgroup_id_x 1
.end_amdhsa_kernel""")
sys.stdout.write(a.text())
sys.stderr.write(f"vgpr {NVGPR} lds {LDS}\n")
```

```python
import sys, argparse, copy
from asmlib import Asm
ap = argparse.ArgumentParser()
ap.add_argument("--ts", type=int, default=0)
ap.add_argument("--forceslow", type=int, default=32)
ap.add_argument("--pst", type=int, default=0)
ap.add_argument("--stflags", type=str, default="")
ap.add_argument("--rot", type=int, default=0)
ap.add_argument("--eb", type=int, default=1)
ap.add_argument("--pf", type=int, default=0)
ap.add_argument("--ldl", type=int, default=0)
ap.add_argument("--mf", type=int, default=1)
ap.add_argument("--tx", type=int, default=0)
ap.add_argument("--iw", type=int, default=1)
ap.add_argument("--md", type=str, default="")
ap.add_argument("--share", type=int, default=0)
ap.add_argument("--skipv", type=int, default=0)
ap.add_argument("--prio", type=int, default=0)
ap.add_argument("--ecv", type=int, default=0)
ap.add_argument("--paths", type=str, default="L1:7;G4:4;G4:4;G4:4")
args = ap.parse_args()
TS = args.ts
WPW = 4

NAME = "standalone__sequential_behavior_din__recsys_kernel"
NWG = 4096 // WPW
S_HEX = "0xbfb8aa3b"
KSH = 24
SC_F32 = (127 - KSH) << 23
SC_BF = (127 - KSH) << 7
IMG_ACS, IMG_WDS, IMG_AP, IMG_B1, IMG_W2, IMG_B2 = 0, 1024, 2048, 3072, 3136, 3200
WAVE0 = 3264
IW = args.iw
if IW:
    assert not args.tx
    IMG_B2, IMG_SEL, WAVE0 = 3264, 3328, 3456
L_OFF = 6400
SB_OFF = L_OFF + 1024
SBLK = [SB_OFF, SB_OFF + 128]
TF_OFF = SB_OFF + 256
WSZ = TF_OFF + 256
CK = (SB_OFF // 32) & ~3
def b3off(j):
    o = SBLK[j >> 1] - CK * 32
    assert o >= 0 and o % 8 == 0 and o // 8 + 8 < 256
    return o // 8
LDS = WAVE0 + WPW * WSZ
assert WAVE0 % 64 == 0 and WSZ % 64 == 0 and LDS <= 40960

a = Asm()
hdr = open("standalone__sequential_behavior_din__recsys.s.ref").read().split("; Override")[0]
a.raw(hdr.rstrip())
a.raw(f"; @launch grid=({NWG},1,1) block=({64*WPW},1,1) lds={LDS}")
a.raw('.amdgcn_target "amdgcn-amd-amdhsa--gfx950"')
a.raw(".text")
a.raw(f".globl {NAME}")
a.raw(".p2align 8")
a.raw(f".type {NAME},@function")
a.raw(f"{NAME}:")

nv = [1]
def V(n=1, al=None):
    al = al or (2 if n > 1 else 1)
    while nv[0] % al: nv[0] += 1
    r = nv[0]; nv[0] += n
    return r
vL16 = V(); vG8 = V(2); vS = vG8 + 1; vC8 = V(); vE1a = V(); vE3a = V(); vEMa = V()
vB1 = vG8; vA3 = vC8; vEg = vE1a; vH = vE3a
W4 = V(4); A2 = V(2); C2 = V(4); vAW = C2 + 1; vAB3 = C2 + 2; vOut = C2 + 3
Aj = [V(2) for _ in range(4)]
Cj = [V(4) for _ in range(4)]
D3 = [V(4), V(4), None, None]
base_tmp = nv[0]
ACS = V(4); WDS = V(4); AP = V(4); B1S = V(4)
T = [V(4) for _ in range(4)]; TM = [V(4) for _ in range(4)]
maxD1 = nv[0]
nv[0] = base_tmp
B1 = [[V(2), V(2)] for _ in range(2)]
D1 = [[V(4), V(4)] for _ in range(2)]
A3 = [V(4) for _ in range(2)]
B3 = V(4); D2 = V(4)
P = [V(2), V(2)]
tn = [V(2), V(2)]
maxE1 = nv[0]
nv[0] = max(maxD1, maxE1)
base2 = nv[0]
wa = V(4); wb = wa + 1; wc = wa + 2; wd = wa + 3
b1v = V(); w2v = V(); tv = V(); b2v = V()
vM = V(4)
vLane = V(); vL2 = V(); vL2m = V(); vT2 = V(); vN = V(); vG = V(); t0 = V(); t1 = V(); t2 = V(); t3 = V()
vPA = V(); vB16 = V(); vTg = V(); vU = V(); vRow = V(); vZ = V()
maxD2 = nv[0]
nv[0] = base2
GA1 = V(8); GA3 = V(8); EM = V(2); sc = V(); o01 = V(2)
GV = GA3; GX = GA1 if not args.tx else TM[3];
D3[2] = GA1 + 4; D3[3] = GA3 + 4
assert sc % 2 == 0 and o01 == sc + 2
EMP = [GA1, GA1 + 2, EM, sc]
SELA = A2; SELB = C2; B2G = C2 + 2
maxE2 = nv[0]
Q23 = vTg
assert vTg % 2 == 0 and (vU, vRow, vZ) == (vTg + 1, vTg + 2, vTg + 3) and vTg >= maxE2
QQ = [W4, W4 + 2, Q23, Q23 + 2]
NVGPR = max(maxD2, maxE2)
rk = [wa, wb, wc, wd]

stamps = []
def pstamp(idx):
    if args.pst: stamp(idx, True)
def stamp(idx=None, force=False):
    if args.pst and not force and stamps: return
    if TS >= 2:
        r = 68 + 2 * (len(stamps) if idx is None else idx)
        a.salu(f"s_memrealtime s[{r}:{r+1}]")
        if r not in stamps: stamps.append(r)
a.salu(f"s_cmp_ge_u32 s2, {NWG}")
a.salu("s_cbranch_scc1 L_done")
if TS:
    a.salu("s_memrealtime s[60:61]")
    a.salu("s_memtime s[90:91]")
    a.salu("s_load_dwordx2 s[64:65], s[0:1], 72")
a.salu("s_load_dwordx16 s[4:19], s[0:1], 0")
a.salu("s_getreg_b32 s52, hwreg(HW_REG_HW_ID, 0, 4)")
if TS: a.salu("s_mov_b32 s94, s52")
def head1(pi):
    a.valu("v_lshrrev_b32", t0, "6", 0)
    a.valu("v_and_b32", vLane, "63", 0)
    a.ins("rfl", f"v_readfirstlane_b32 s3, v{t0}", rd=[t0], swr=["s3"])
    if args.pf and pi == 0:
        a.salu("s_getpc_b64 s[54:55]")
        a.raw("L_pc:")
        if args.pf >= 2:
            a.salu("s_cmp_lg_u32 s3, 0")
            a.salu("s_cbranch_scc1 L_npf")
        if args.pf <= 2:
            a.valu("v_lshlrev_b32", t2, "7", vLane)
            a.valu("v_add_u32", vPA, "0x2000", t2)
            a.valu("v_min_u32", t2, "L_codeend-L_pc-4", t2)
            a.valu("v_min_u32", vPA, "L_codeend-L_pc-4", vPA)
            a._emit(f"global_load_dword v{Cj[0]}, v{t2}, s[54:55]")
            a._emit(f"global_load_dword v{Cj[0]+1}, v{vPA}, s[54:55]")
        else:
            nb = args.pf - 2
            a.salu(f"s_getreg_b32 s53, hwreg(HW_REG_HW_ID, 8, {nb})")
            a.salu(f"s_lshl_b32 s53, s53, {14 - nb}")
            a.valu("v_lshl_add_u32", t2, vLane, "7", "s53")
            a.valu("v_min_u32", t2, "L_codeend-L_pc-4", t2)
            if nb == 2: a.salu("s_mov_b32 exec_hi, 0")
            a._emit(f"global_load_dword v{Cj[0]}, v{t2}, s[54:55]")
            if nb == 2: a.salu("s_mov_b32 exec_hi, -1")
        a.raw("L_npf:")
    a.valu("v_add_u32", vT2, 0, 0)
    a.valu("v_add_u32", vL2, vLane, vLane)
    a.valu("v_add_u32", vL2m, vLane, vLane)
    a.valu("v_lshlrev_b32", vL16, "4", vLane)
    a.valu("v_and_b32", vN, "15", vLane)
    a.valu("v_lshrrev_b32", vG, "4", vLane)
    a.valu("v_mov_b32", t3, "0")
    a.valu("v_add_u32", t1, vN, vN)
    a.salu(f"s_mul_i32 s36, s3, {WSZ}")
    a.salu(f"s_add_u32 s36, s36, {WAVE0}")
    a.salu(f"s_mul_i32 s32, s2, {WPW}")
    a.salu("s_add_u32 s32, s32, s3")
    a.salu("s_mul_i32 s33, s32, 6400")
    a.salu("s_mul_i32 s34, s32, 400")
    a.salu("s_lshl_b32 s35, s32, 7")
    a.salu(f"s_add_u32 s41, s36, {L_OFF}")
    a.salu("s_mov_b32 s40, s41")
    a.salu(f"s_mov_b32 s37, {S_HEX}")
    a.salu("s_mov_b32 s22, %d" % (16384 * 1600))
    a.salu("s_mov_b32 s23, 0x20000")
    a.salu("s_mov_b32 s26, %d" % (16384 * 100))
    a.salu("s_mov_b32 s27, 0x20000")
    a.salu("s_mov_b32 s30, %d" % (16384 * 32))
    a.salu("s_mov_b32 s31, 0x20000")
    a.salu("s_mov_b32 s46, %d" % (16384 * 32))
    a.salu("s_mov_b32 s47, 0x20000")
    a.salu("s_mov_b32 m0, s36", swr=["m0"])
    if args.rot:
        a.salu("s_lshr_b32 s42, s2, 3")
        a.salu("s_add_u32 s42, s42, s3")
        a.salu("s_and_b32 s42, s42, 3")
    else:
        a.salu("s_mov_b32 s42, s3")
    a.valu("v_add_u32", vRow, vL16, vL16)
    a.salu("s_mov_b32 exec_lo, 0")
    a.salu("s_mov_b32 exec_hi, 0xfffc0000")
    a.valu("v_mov_b32", vL2m, "0x7ff00000")
    a.valu("v_mov_b32", vRow, str(49 * 32))
    a.salu("s_mov_b64 exec, -1")
    a._emit("s_waitcnt lgkmcnt(0)")
    stamp(0, True)


if not args.eb: head1(0)
K = ["L"]
issued = [0]
def dma(k):
    if K[0] == "L":
        if k == 4: a.salu("s_add_u32 m0, s36, 4096", swr=["m0"])
        if k == 6: a.salu("s_mov_b64 exec, 0xffff")
        so = "s33" if k < 4 else "s38"
        off = (k % 4) * 1024
        a.ins("dma", f"buffer_load_dwordx4 v{vL16}, s[20:23], {so} offen" + (f" offset:{off}" if off else "") + " lds", rd=[vL16], tag=f"h{k}")
        if k == 6: a.salu("s_mov_b64 exec, -1")
    else:
        if k == 2: a.salu("s_add_u32 m0, s36, 3200", swr=["m0"])
        so = "s33" if k < 2 else "s38"
        off = (k % 2) * 1600
        a.ins("dma", f"buffer_load_dwordx4 v{GV+k}, s[20:23], {so} offen" + (f" offset:{off}" if off else "") + " lds", rd=[GV + k], tag=f"h{k}")
guard = [False, 0]
def dma_upto(n):
    todo = issued[0] < min(n, 7 if K[0] == "L" else 4)
    if todo and guard[0]:
        a.salu("s_cmp_lg_u32 s53, 0")
        a.salu(f"s_cbranch_scc1 L_gd{guard[1]}")
    while issued[0] < min(n, 7 if K[0] == "L" else 4):
        dma(issued[0]); issued[0] += 1
    if todo and guard[0]:
        a.raw(f"L_gd{guard[1]}:"); guard[1] += 1
def add64(r, off, sh=0):
    a.ins("valu", f"v_lshl_add_u64 v[{r}:{r+1}], v[{r}:{r+1}], {sh}, {off}", rd=[r, r + 1], wr=[r, r + 1])
def gadd(q, off):
    a.ins("valu", f"v_add_u32_sdwa v{q}, v{q}, v{off} dst_sel:DWORD dst_unused:UNUSED_PAD src0_sel:WORD_0 src1_sel:DWORD", rd=[q, off], wr=[q])
def pk(op, dst, srcs, mod=""):
    rd = [r + k for r in srcs if isinstance(r, int) for k in range(2)]
    a.ins("valu", f"{op} v[{dst}:{dst+1}], " + ", ".join(f"v[{r}:{r+1}]" if isinstance(r, int) else r for r in srcs) + (" " + mod if mod else ""), rd=rd, wr=[dst, dst + 1])

def prologue(cfg, pi):
    G = K[0] == "G"
    early = (lambda p: None) if G else (lambda p: dma_upto(cfg.get(p, 0)))
    if IW == 2:
        assert TS < 2
        a.salu("s_load_dwordx8 s[72:79], s[14:15], 0")
    a.salu("s_mov_b32 s20, s6")
    a.salu("s_and_b32 s21, s7, 0xffff")
    a.salu(f"s_add_u32 s38, s33, {3200 if G else 4096}")
    early(-1)
    a.salu("s_cmp_lg_u32 s42, 0")
    a.salu(f"s_cbranch_scc1 L_nb{pi}")
    a.ins("vmem", f"global_load_short_d16_hi v{b2v}, v{t3}, s[16:17]", rd=[t3], wr=[b2v])
    a.ins("vmem", f"global_load_short_d16_hi v{b1v}, v{t1}, s[12:13]", rd=[t1], wr=[b1v])
    a.ins("vmem", f"global_load_short_d16_hi v{w2v}, v{t1}, s[14:15]", rd=[t1], wr=[w2v])
    a.raw(f"L_nb{pi}:")
    def ld_w():
        for i, r in enumerate((wa, wb, wc, wd)):
            a.ins("vmem", f"global_load_short_d16_hi v{r}, v{vT2}, s[10:11]" + (f" offset:{512*i}" if i else ""), rd=[vT2], wr=[r])
        a.salu("s_mov_b32 s44, s4")
        a.salu("s_and_b32 s45, s5, 0xffff")
        a.ins("vmem", f"buffer_load_short_d16_hi v{tv}, v{vL2}, s[44:47], s35 offen", rd=[vL2], wr=[tv])
    def ld_m():
        a.salu("s_mov_b32 s24, s8")
        a.salu("s_and_b32 s25, s9, 0xffff")
        if MD:
            assert issued[0] < 4
            a.salu("s_mov_b32 m0, s41", swr=["m0"])
            a.salu("s_mov_b32 exec_lo, 0x1ffffff")
            a.salu("s_mov_b32 exec_hi, 0")
            a.ins("dma", f"buffer_load_dwordx4 v{vL16}, s[24:27], s34 offen lds", rd=[vL16], tag="mk")
            a.salu("s_mov_b64 exec, -1")
            a.salu("s_mov_b32 m0, s36", swr=["m0"])
            for j in range(4): a.valu("v_mov_b32", vM + j, "0")
            return
        for j in range(4):
            a.ins("vmem", f"buffer_load_short_d16_hi v{vM+j}, v{vL2m}, s[24:27], s34 offen" + (f" offset:{100*j}" if j else ""), rd=[vL2m], wr=[vM + j])
    def rd_m():
        if not MD: return
        a.wait_vm_for(tag="mk")
        a.salu("s_mov_b32 exec_hi, 0x3ffff")
        for j in range(4): a.ds_read("ds_read_u16_d16_hi", vM + j, 1, vAW, L_OFF + 100 * j)
        a.salu("s_mov_b32 exec_hi, -1")
    MD = str(pi) in args.md
    mf = G and args.mf
    ec = mf and cfg.get(2, 0) > 0
    if mf: ld_m(); ld_w()
    else: ld_w(); ld_m()
    pstamp(1)
    early(0)
    a.salu("s_mov_b32 s28, s18")
    a.salu("s_and_b32 s29, s19, 0xffff")
    a.salu("s_mov_b32 s39, 0xffff")
    a.salu("s_lshl_b32 s49, s3, 8")
    a.salu(f"s_mov_b32 s56, {SC_BF:#x}")
    a.salu("s_mov_b32 s57, 0")
    a.valu("v_sub_u32", vZ, "63", vLane)
    a.valu("v_lshlrev_b32", t0, "3", vG)
    a.valu("v_lshl_add_u32", vOut, vN, "5", t0)
    a.valu("v_add_u32", vB16, t0, t0)
    a.valu("v_add_u32", vTg, "s36", vB16)
    if not IW: a.valu("v_mov_b32", vS, f"{SC_F32:#x}")
    TX = G and args.tx
    if TX:
        a.valu("v_lshl_add_u32", vU, vLane, "2", "s36")
        a.valu("v_lshlrev_b32", SELA, vL16, "s56")
        a.valu("v_mov_b32", SELA + 1, "0")
        a.valu("v_mov_b32", SELB, "0")
        a.valu("v_mov_b32", SELB + 1, SELA)
    else:
        a.valu("v_add_u32", vAW, "s36", vL2)
        a.valu("v_add_u32", vU, vAW, vL2)
        if not IW: a.ins("valu", f"v_lshlrev_b64 v[{A2}:{A2+1}], v{vU}, s[56:57]", rd=[vU], wr=[A2, A2 + 1])
        a.salu(f"s_add_u32 s50, s36, {CK*32}")
        a.valu("v_and_b32", t3, "0x38", vOut)
        a.valu("v_add_u32", vAB3, "s50", t3)
    if not G:
        a.valu("v_add_u32", vG8, "s36", t0)
        a.valu("v_and_b32", t3, "3", vLane)
        a.valu("v_lshl_add_u32", vC8, t3, "3", "s36")
        a.valu("v_lshl_add_u32", vE1a, vN, "3", "s41")
        a.valu("v_and_b32", t3, "0x78", vL2)
        a.valu("v_add_u32", vE3a, "s41", t3)
        a.valu("v_lshrrev_b32", t3, "5", vLane)
        a.valu("v_lshl_add_u32", vEMa, t3, "2", vE1a)
        a.valu("v_and_b32", t3, "16", vLane)
        a.valu("v_lshl_add_u32", vEMa, t3, "4", vEMa)
    else:
        a.valu("v_and_b32", t3, "16", vL2)
        a.valu("v_xad_u32", vB1, vOut, t3, "s36")
        a.valu("v_lshrrev_b32", t3, "1", vLane)
        a.valu("v_lshl_add_u32", vEg, t3, "2", "s41")
        a.valu("v_and_b32", t3, "16", t3)
        a.valu("v_lshrrev_b32", t0, "1", vL16)
        a.valu("v_xad_u32", vA3, t0, t3, "s36")
        a.valu("v_xor_b32", vH, vL16, vLane)
        a.valu("v_and_b32", vH, "16", vH)
        if TX:
            a.valu("v_lshl_add_u32", vEMa, vN, "2", "s41")
        else:
            a.valu("v_lshl_add_u32", vEMa, t3, "2", "s41")
            a.valu("v_lshl_add_u32", vEMa, vN, "2", vEMa)
            a.valu("v_and_b32", t3, "16", vLane)
            a.valu("v_lshl_add_u32", vEMa, t3, "4", vEMa)
    rk = [T[0], T[0] + 1, T[0] + 2, T[0] + 3] if ec else [wa, wb, wc, wd]
    def compaction():
        for j in range(4):
            a.ins("valu", f"v_cmp_lt_u32 s[{48+2*j}:{49+2*j}], s39, v{vM+j}", rd=[vM + j], swr=[f"s{48+2*j}", f"s{49+2*j}"])
        for j in range(4): a.valu("v_or_b32", vM + j, vRow, vM + j)
        for j in range(4): a.valu("v_cndmask_b32", rk[j], vZ, "0", f"s[{48+2*j}:{49+2*j}]")
        for j in range(4): a.valu("v_mbcnt_lo_u32_b32", rk[j], f"s{48+2*j}", rk[j])
        for j in range(4): a.valu("v_mbcnt_hi_u32_b32", rk[j], f"s{49+2*j}", rk[j])
        for j in (0, 2): add64(rk[j], "s[40:41]", 2)
        for j in range(4): a.ds_write("ds_write_b32", rk[j], vM + j, 1, 256 * j)
        for j in range(4):
            a.salu(f"s_bcnt1_i32_b64 s{56+j}, s[{48+2*j}:{49+2*j}]")
        a.salu("s_max_u32 s43, s56, s57")
        a.salu("s_max_u32 s48, s58, s59")
        a.salu("s_max_u32 s43, s43, s48")
    def gv_read():
        for j in (0, 2):
            a.ins("ds", f"ds_read2st64_b32 v[{GV+j}:{GV+j+1}], v{vEg} offset0:{j} offset1:{j+1}", rd=[vEg], wr=[GV + j, GV + j + 1])
    def gv_issue(n):
        for j in range(4): gadd(GV + j, vH)
        dma_upto(n)
    a.valu("v_lshl_add_u32", t3, vN, "4", "s49")
    a.valu("v_lshl_add_u32", vPA, vG, "2", t3)
    if IW == 2:
        a.valu("v_lshlrev_b32", t2, "2", vN)
        a.valu("v_and_b32", t0, "2", vN)
        a.valu("v_lshlrev_b32", t0, "5", t0)
        a.valu("v_and_b32", t3, "12", vN)
        a.valu("v_lshl_add_u32", t0, t3, "2", t0)
        a.valu("v_and_b32", t3, "1", vN)
        a.valu("v_lshl_add_u32", t0, t3, "3", t0)
        a._emit("s_waitcnt lgkmcnt(0)")
        for i in range(8): a.salu(f"s_and_b32 s{4+i}, s{72+i}, 0x7f807f80")
        for i in range(8): a.salu(f"s_lshl_b32 s{12+i}, s{4+i}, 16")
        for st in (8, 4, 2, 1):
            for i in range(st): a.salu(f"s_max_u32 s{4+i}, s{4+i}, s{4+st+i}")
        a.salu("s_and_b32 s4, s4, 0x7f800000")
        a.salu(f"s_max_u32 s4, s4, {(KSH + 1) << 23:#x}")
        a.salu(f"s_min_u32 s4, s4, {253 << 23:#x}")
        a.salu(f"s_sub_u32 s5, {254 << 23:#x}, s4")
        a.salu("s_lshr_b32 s56, s4, 16")
        a.salu(f"s_sub_u32 s56, s56, {KSH << 7:#x}")
        a.salu("s_mov_b32 s6, 0x7fffffff")
        a.salu(f"s_mov_b32 s7, {(127 - 28) << 23:#x}")
        a.salu("s_mov_b32 s8, 0xc1c00000")
        a.ins("valu", f"v_lshlrev_b64 v[{A2}:{A2+1}], v{vU}, s[56:57]", rd=[vU], wr=[A2, A2 + 1])
    if not G and args.ldl:
        for _ in range(args.ldl): a.salu("s_nop 15")
    if cfg.get(99): a.salu(f"s_sleep {cfg[99]}")
    early(1)
    pstamp(2)
    if ec:
        rd_m()
        compaction(); gv_read()
        pstamp(3)
        gv_issue(cfg[2])
    a.valu("v_add_f32", wa, wa, wc)
    if not ec: pstamp(3)
    a.valu("v_sub_f32", wb, wb, wc)
    a.valu("v_mul_f32", wa, "s37", wa)
    a.valu("v_mul_f32", wb, "s37", wb)
    a.valu("v_mul_f32", wd, "s37", wd)
    a.ds_write("ds_write_b32", vPA, wa, 1, IMG_ACS)
    a.valu("v_cvt_pk_bf16_f32", t1, wb, wb)
    a.ds_write("ds_write_b32", vPA, wd, 1, IMG_WDS)
    a.ds_write("ds_write_b32", vPA, t1, 1, IMG_AP)
    a.salu("s_cmp_lg_u32 s42, 0")
    a.salu(f"s_cbranch_scc1 L_np{pi}")
    if IW == 2:
        qs, q0 = TM[0], TM[1]
        a.valu("v_mul_f32", w2v, "s5", w2v)
        a.valu("v_mul_f32", b1v, "s37", b1v)
        a.ins("valu", f"v_max_f32_e64 v{qs}, |v{w2v}|, s7", rd=[w2v], wr=[qs])
        a.valu("v_bfi_b32", qs, "s6", qs, w2v)
        a.valu("v_rcp_f32", q0, qs, kind="trans")
        a.valu("v_add_f32", b1v, "s8", b1v)
        a.valu("v_mul_f32", q0 + 1, f"{SC_F32:#x}", q0)
    else:
        a.valu("v_mov_b32", t0, "0xc1c00000")
        a.valu("v_lshlrev_b32", t2, "2", vN)
        a.valu("v_fma_f32", b1v, b1v, "s37", t0)
    if IW == 1:
        qe, qs, q0, q1 = TM[0], TM[0] + 1, TM[1], TM[1] + 2
        a.valu("v_and_b32", qe, "0x7f800000", w2v)
        for rr in (8, 4, 2, 1):
            a.nop(2)
            a.ins("valu", f"v_max_u32_dpp v{qe}, v{qe}, v{qe} row_ror:{rr} row_mask:0xf bank_mask:0xf", rd=[qe], wr=[qe])
        a.valu("v_max_u32", qe, f"{(KSH + 1) << 23:#x}", qe)
        a.valu("v_min_u32", qe, f"{253 << 23:#x}", qe)
        a.valu("v_sub_u32", qs, f"{254 << 23:#x}", qe)
        a.valu("v_mul_f32", w2v, w2v, qs)
        a.valu("v_mov_b32", t0, f"{(127 - 28) << 23:#x}")
        a.ins("valu", f"v_max_f32_e64 v{qs}, |v{w2v}|, v{t0}", rd=[w2v, t0], wr=[qs])
        a.salu("s_mov_b32 s51, 0x7fffffff" if not ec else "s_mov_b32 s49, 0x7fffffff")
        a.valu("v_bfi_b32", qs, "s51" if not ec else "s49", qs, w2v)
        a.valu("v_rcp_f32", q0, qs, kind="trans")
        a.valu("v_lshrrev_b32", q1, "16", qe)
        a.valu("v_mul_f32", q0 + 1, f"{SC_F32:#x}", q0)
        a.valu("v_subrev_u32", q1, f"{KSH << 7:#x}", q1)
        a.valu("v_mov_b32", q1 + 1, "0")
        a.valu("v_and_b32", t0, "2", vN)
        a.valu("v_lshlrev_b32", t0, "5", t0)
        a.valu("v_and_b32", t3, "12", vN)
        a.valu("v_lshl_add_u32", t0, t3, "2", t0)
        a.valu("v_and_b32", t3, "1", vN)
        a.valu("v_lshl_add_u32", t0, t3, "3", t0)
        a.valu("v_add_u32", t3, t2, t2)
    a.salu("s_mov_b64 exec, 0xffff")
    a.ds_write("ds_write_b32", t2, b1v, 1, IMG_B1)
    if IW:
        a.ds_write("ds_write_b64", t0, q0, 2, IMG_W2)
        if IW == 1: a.ds_write("ds_write_b64", t3, q1, 2, IMG_SEL)
    else:
        a.ds_write("ds_write_b32", t2, w2v, 1, IMG_W2)
    a.ds_write("ds_write_b32", t2, b2v, 1, IMG_B2)
    a.salu("s_mov_b64 exec, -1")
    a.raw(f"L_np{pi}:")
    early(2)
    a.ds_write("ds_write_b32", vU, tv, 1, TF_OFF)
    pre = G and cfg.get(2, 0) > 0
    if not ec: rd_m()
    if pre and not ec:
        compaction(); gv_read(); gv_issue(cfg[2])
    a.wait_lds_all()
    stamp(1)
    pstamp(4)
    a._emit("s_barrier")
    pstamp(5)
    for j in range(2):
        a.ds_read("ds_read_b128", T[j], 4, vTg, TF_OFF + 64 * j)
    a.ds_read("ds_read_b128", ACS, 4, vL16, IMG_ACS)
    a.ds_read("ds_read_b128", WDS, 4, vL16, IMG_WDS)
    for j in range(2, 4):
        a.ds_read("ds_read_b128", T[j], 4, vTg, TF_OFF + 64 * j)
    a.ds_read("ds_read_b128", AP, 4, vL16, IMG_AP)
    a.ds_read("ds_read_b128", B1S, 4, vB16, IMG_B1)
    a.ds_read("ds_read_b128", W4, 4, vB16, IMG_W2)
    a.ds_read("ds_read_b32", B2G if TX else C2, 1, vB16, IMG_B2)
    if IW == 1: a.ds_read("ds_read_b64", A2, 2, vB16, IMG_SEL)
    early(3)
    if not pre:
        compaction()
        early(4)
        if G: gv_read()
    if not G:
        for j in range(4):
            a.ds_read("ds_read_b64", GA1 + 2 * j, 2, vE1a, 256 * j)
    for j in range(4):
        for k in (0, 2): pk("v_pk_fma_f32", TM[j] + k, [T[j] + k, WDS + k, ACS + k])
    if G and not pre: gv_issue(cfg.get(4, 0))
    if pre: dma_upto(cfg.get(4, 0))
    if not G:
        for j in range(4):
            a.ds_read("ds_read_b64", GA3 + 2 * j, 2, vE3a, 256 * j)
    if TX:
        for j in range(4):
            for i in range(2): a.ds_read("ds_read_u16_d16_hi", EMP[j] + i, 1, vEMa, 256 * j + 64 * i + 2)
        a.valu("v_mul_f32", B2G, f"{(127 + KSH - 2) << 23:#x}", B2G)
    else:
        for h in range(2):
            a.ds_read("ds_read_u16_d16_hi", EM + h, 1, vEMa, 512 * h + 2)
    if IW:
        if IW == 1: a.ins("valu", f"v_lshlrev_b64 v[{A2}:{A2+1}], v{vU}, v[{A2}:{A2+1}]", rd=[vU, A2, A2 + 1], wr=[A2, A2 + 1])
        a.ds_read("ds_read_b128", Q23, 4, vB16, IMG_W2 + 64)
    for j in range(4):
        a.mfma(Cj[j], AP, T[j], B1S)
    for j in range(4):
        a.valu("v_cvt_pk_bf16_f32", Aj[j], TM[j], TM[j] + 1)
        a.valu("v_cvt_pk_bf16_f32", Aj[j] + 1, TM[j] + 2, TM[j] + 3)
    if not G:
        for t in range(8): gadd(GA1 + t, vG8)
    dma_upto(max(cfg.get(5, 0), 1 if G else 2))

def parse(c): return {int(x.split(":")[0]): int(x.split(":")[1]) for x in c.split(",") if x}
def need(j): return {0: 1, 1: 3, 2: 4, 3: 6}[j] if K[0] == "L" else j
def L(j):
    dma_upto(need(j) + 1)
    a.wait_vm_for(tag=f"h{need(j)}")
    for i in range(2):
        if K[0] == "L": a.ds_read("ds_read_b64", B1[j % 2][i], 2, GA1 + 2 * j + i, 1600 * j)
        else: a.ds_read("ds_read_b64", B1[j % 2][i], 2, vB1, 1600 * j + 512 * i)
def M(j):
    for i in range(2):
        a.mfma16(D1[j % 2][i], Aj[j], B1[j % 2][i], Cj[j])
def S(dd, dst, second, mid=None, em=None):
    A_, B_ = dd
    u = tn[0]; assert tn[1] == u + 2
    Pp = [u, u + 2, A_, B_]
    for (h, r) in ((0, 0), (0, 1), (0, 2), (1, 0), (1, 1), (0, 3), (1, 2), (1, 3))[:4 if args.skipv & 2 else 8]:
        a.ins("trans", f"v_exp_f32_e64 v{Pp[r]+h}, v{dd[h]+r} clamp", rd=[dd[h] + r], wr=[Pp[r] + h])
    if mid: mid()
    n01, n23 = A_ + 2, B_ + 2
    if IW:
        for r in range(4): pk("v_pk_fma_f32", Pp[r], [Pp[r], QQ[r], QQ[r]], "op_sel:[0,0,1] op_sel_hi:[1,0,1]")
        pk("v_pk_mul_f32", n23, [Pp[0], Pp[1]])
        pk("v_pk_add_f32", n01, [Pp[0], Pp[1]])
        pk("v_pk_mul_f32", Pp[0], [n23, Pp[2]])
        pk("v_pk_fma_f32", n01, [n01, Pp[2], n23])
        pk("v_pk_mul_f32", Pp[1], [Pp[0], Pp[3]])
        for i in range(2): a.valu("v_rcp_f32", Pp[1] + i, Pp[1] + i, kind="trans")
        pk("v_pk_fma_f32", n01, [n01, Pp[3], Pp[0]])
    else:
        if not args.skipv & 1:
            for r in range(4): pk("v_pk_add_f32", Pp[r], [Pp[r], vG8], "op_sel:[0,1] op_sel_hi:[1,1]")
        pk("v_pk_mul_f32", n01, [W4, Pp[1]], "op_sel:[0,0] op_sel_hi:[0,1]")
        pk("v_pk_mul_f32", n23, [W4 + 2, Pp[3]], "op_sel:[0,0] op_sel_hi:[0,1]")
        pk("v_pk_fma_f32", n01, [W4, Pp[0], n01], "op_sel:[1,0,0] op_sel_hi:[1,1,1]")
        pk("v_pk_fma_f32", n23, [W4 + 2, Pp[2], n23], "op_sel:[1,0,0] op_sel_hi:[1,1,1]")
        pk("v_pk_mul_f32", Pp[0], [Pp[0], Pp[1]])
        pk("v_pk_mul_f32", Pp[2], [Pp[2], Pp[3]])
        pk("v_pk_mul_f32", Pp[1], [Pp[0], Pp[2]])
        pk("v_pk_mul_f32", n01, [n01, Pp[2]])
        for i in range(2): a.valu("v_rcp_f32", Pp[1] + i, Pp[1] + i, kind="trans")
        pk("v_pk_fma_f32", n01, [n23, Pp[0], n01])
    last = Pp[1]
    if em is not None:
        pk("v_pk_fma_f32", n01, [n01, Pp[1], B2G], "op_sel:[0,0,0] op_sel_hi:[1,1,0]")
        last = em
    if second == 0:
        pk("v_pk_mul_f32", dst, [n01, last])
    else:
        pk("v_pk_mul_f32", n01, [n01, last])
        for i in range(2):
            a.valu("v_cvt_pk_bf16_f32", dst + i, (dst if second == 1 else n01) + i, n01 + i)
def Sj(j, mid=None):
    S(D1[j % 2], P[j // 2], j % 2, mid, EMP[j] if istx() else None)
def istx(): return K[0] == "G" and args.tx
def W(h):
    if istx():
        a.mfma16(B3, P[h], SELB, "0")
        a.mfma16(D2, P[h], SELA, "0")
    else:
        a.mfma16(D2, A2, P[h], C2)
def Xt():
    a.valu("v_cvt_pk_bf16_f32", B3 + 3, B3 + 2, B3 + 3)
    a.valu("v_cvt_pk_bf16_f32", B3 + 2, B3, B3 + 1)
    a.valu("v_cvt_pk_bf16_f32", B3, D2, D2 + 1)
    a.valu("v_cvt_pk_bf16_f32", B3 + 1, D2 + 2, D2 + 3)
def ocvt(js):
    for j in js:
        m = (1 << j) | (1 << (j + 16))
        a.salu(f"s_mov_b32 exec_lo, {m:#x}")
        a.salu(f"s_mov_b32 exec_hi, {m:#x}")
        a.valu("v_cvt_pk_bf16_f32", o01, D3[j], D3[j] + 1)
        a.valu("v_cvt_pk_bf16_f32", o01 + 1, D3[j] + 2, D3[j] + 3)
def T3(h):
    for i in range(2):
        j = 2 * h + i
        for u in range(2):
            if K[0] == "L": a.ds_read("ds_read_b64_tr_b16", A3[i] + 2 * u, 2, GA3 + 2 * j + u, 1600 * j)
            else: a.ds_read("ds_read_b64_tr_b16", A3[i] + 2 * u, 2, vA3, 1600 * j + 512 * u)
def rdB3(dst, j):
    o = b3off(j)
    a.ins("ds", f"ds_read2_b64 v[{dst}:{dst+3}], v{vAB3} offset0:{o} offset1:{o+8}", rd=[vAB3], wr=range(dst, dst + 4))
def X(h):
    if istx(): return Xt()
    a.valu("v_mul_f32", sc, D2, EM + h)
    a.valu("v_cvt_pk_bf16_f32", sc, sc, sc)
    a.ds_write("ds_write_b16", vAW, sc, 1, SBLK[h])
    rdB3(B3, 2 * h)
def Y(h):
    for i in range(2): a.mfma(D3[2 * h + i], A3[i], B3, "0")

def main1(CM, pi):
    G = K[0] == "G"
    if G:
        a.salu(f"s_cmp_gt_u32 s43, {args.forceslow}")
        a.salu(f"s_cbranch_scc1 L_xd{pi}")
        a.raw(f"L_xb{pi}:")
        a.m0_write = a.pos
        if args.share and pi == 1:
            assert issued[0] == 4
            a.salu("s_mov_b32 s53, 1")
            a.wait_lds_all()
            a.salu("s_branch L_shared")
            return
        if args.share and pi == 2:
            a.salu("s_mov_b32 s53, 0")
            a.raw("L_shared:")
            guard[0] = True
    stamp(2)
    L(0)
    dma_upto(CM.get(6, 0))
    if not G:
        for t in range(8): gadd(GA3 + t, vC8)
    M(0)
    dma_upto(CM.get(7, 0))
    Sj(0, mid=lambda: (L(1), dma_upto(CM.get(8, 0))))
    M(1)
    dma_upto(CM.get(9, 0))
    stamp(3)
    Sj(1, mid=lambda: (L(2), T3(0), dma_upto(CM.get(10, 0))))
    M(2)
    W(0)
    dma_upto(7)
    if args.prio == 2 and G: a.salu("s_setprio 0")
    stamp(4)
    Sj(2, mid=lambda: X(0))
    Y(0)
    L(3)
    T3(1)
    M(3)
    if args.ecv:
        ocvt((0, 1))
        a.salu("s_mov_b64 exec, -1")
    stamp(5)
    Sj(3)
    W(1)
    X(1)
    Y(1)
    assert not a.lds_q and not a.vm_q
    a.salu(f"s_cmp_gt_u32 s43, {args.forceslow}")
    a.salu(f"s_cbranch_scc1 L_slow{K[0]}")

paths = args.paths.split(";")
assert len(paths) == 4
groups = []
for sl, c in enumerate(paths):
    if not groups or groups[-1][1] != c: groups.append((sl, c))
for gi in range(len(groups) - 1, 0, -1):
    a.salu(f"s_cmp_ge_u32 s52, {groups[gi][0]}")
    a.salu(f"s_cbranch_scc1 L_path{gi}")
snap = copy.deepcopy({k: v for k, v in a.__dict__.items() if k != "lines"})
xd = []
for gi, (sl, c) in enumerate(groups):
    if gi: a.raw(f"L_path{gi}:")
    a.__dict__.update(copy.deepcopy(snap)); issued[0] = 0
    K[0] = c[0]; cfg = parse(c[1:])
    if args.prio and K[0] == "G": a.salu("s_setprio 3")
    if args.prio == 4 and K[0] == "L": a.salu("s_setprio 3")
    if args.eb: head1(gi)
    prologue(cfg, gi)
    if args.prio in (1, 4): a.salu("s_setprio 0")
    if args.prio == 3 and K[0] == "G": a.salu(f"s_setprio {gi}")
    if K[0] == "G": xd.append((gi, issued[0]))
    main1(cfg, gi)
    sys.stderr.write(f"path {c}: nops {a.nops} stat {a.stat}\n")
    guard[0] = False
    if gi < len(groups) - 1 and not (args.share and gi == 1): a.salu("s_branch L_back")
a.raw("L_back:")
a.nop(2)
if args.ecv: a.nop(2)
ocvt((2, 3) if args.ecv else (0, 1, 2, 3))
a.salu("s_mov_b32 exec_lo, 0x000f000f")
a.salu("s_mov_b32 exec_hi, 0x000f000f")
a.ins("vmemst", f"buffer_store_dwordx2 v[{o01}:{o01+1}], v{vOut}, s[28:31], s35 offen {args.stflags}", rd=[o01, o01 + 1, vOut])
if TS:
    a.raw("""    s_waitcnt vmcnt(0)
    s_memrealtime s[62:63]
    s_memtime s[92:93]
    s_lshl_b32 s66, s32, 4
    v_mov_b32 v1, s66
    s_waitcnt lgkmcnt(0)
    v_mov_b32 v4, s60
    s_sub_u32 s92, s92, s90
    v_mov_b32 v5, s92
    v_mov_b32 v6, s62
    s_lshl_b32 s95, s43, 8
    s_or_b32 s94, s94, s95
    s_getreg_b32 s95, hwreg(HW_REG_HW_ID, 8, 8)
    s_lshl_b32 s95, s95, 16
    s_or_b32 s94, s94, s95
    v_mov_b32 v7, s94
    s_mov_b64 exec, 1
    global_store_dwordx4 v1, v[4:7], s[64:65]""")
    if TS >= 2:
        a.raw("    s_lshl_b32 s66, s32, 5\n    s_add_u32 s66, s66, 0x100000\n    v_mov_b32 v1, s66")
        st = [60] + stamps + [62]
        assert len(st) == 8
        for i, r in enumerate(st):
            a.raw(f"    v_mov_b32 v{8+i}, s{r}")
        a.raw("    global_store_dwordx4 v1, v[8:11], s[64:65]\n    global_store_dwordx4 v1, v[12:15], s[64:65] offset:16")
a.raw("L_done:")
a.raw("    s_endpgm")
for gi, nis in xd:
    a.raw(f"L_xd{gi}:")
    a.lds_q = []; a.vm_q = []
    a._emit("s_waitcnt lgkmcnt(0)")
    for j in range(4):
        a.salu(f"s_cmp_le_u32 s{56+j}, {args.forceslow}")
        a.salu(f"s_cbranch_scc1 L_xs{gi}_{j}")
        a.ds_read("ds_read_b32", GX + j, 1, vEg, 256 * j + 128)
        a.salu(f"s_add_u32 m0, s36, {1600*j+1024}", swr=["m0"])
        a.salu(f"s_add_u32 s48, s33, {1600*j}")
        gadd(GX + j, vH)
        a.salu("s_mov_b32 exec_hi, 15")
        a.ins("dma", f"buffer_load_dwordx4 v{GX+j}, s[20:23], s48 offen lds", rd=[GX + j], tag="x")
        a.salu("s_mov_b32 exec_hi, -1")
        a.raw(f"L_xs{gi}_{j}:")
    a.salu(f"s_add_u32 m0, s36, {3200 if nis > 2 else 0}", swr=["m0"])
    a.raw(f"    s_branch L_xb{gi}")
for kind in sorted(set(c[0] for sl, c in groups)):
    K[0] = kind; G = kind == "G"
    a.raw(f"L_slow{kind}:")
    a.lds_q = []; a.vm_q = []
    a.nop(4)
    for j in range(4):
        a.salu(f"s_cmp_le_u32 s{56+j}, {args.forceslow}")
        a.salu(f"s_cbranch_scc1 L_sk{kind}{j}")
        if not G:
            a.ds_read("ds_read_b64", GA1, 2, vE1a, 256 * j + 128)
            a.ds_read("ds_read_b64", GA3, 2, vE3a, 256 * j + 128)
        if istx():
            for i in range(2): a.ds_read("ds_read_u16_d16_hi", EM + i, 1, vEMa, 256 * j + 2 + 128 + 64 * i)
        else:
            a.ds_read("ds_read_u16_d16_hi", EM, 1, vEMa, 256 * j + 2 + 128)
        if not G:
            for t in range(2): gadd(GA1 + t, vG8)
        for i in range(2):
            if G: a.ds_read("ds_read_b64", B1[0][i], 2, vB1, 1600 * j + 1024 + 512 * i)
            else: a.ds_read("ds_read_b64", B1[0][i], 2, GA1 + i, 1600 * j)
        if not G:
            for t in range(2): gadd(GA3 + t, vC8)
        for u in range(2):
            if G: a.ds_read("ds_read_b64_tr_b16", A3[0] + 2 * u, 2, vA3, 1600 * j + 1024 + 512 * u)
            else: a.ds_read("ds_read_b64_tr_b16", A3[0] + 2 * u, 2, GA3 + u, 1600 * j)
        for i in range(2):
            a.mfma16(D1[0][i], Aj[j], B1[0][i], Cj[j])
        if istx():
            S(D1[0], P[0], 2, None, EM)
            W(0); Xt()
        else:
            S(D1[0], P[0], 2)
            a.mfma16(D2, A2, P[0], C2)
            a.valu("v_mul_f32", sc, D2, EM)
            a.valu("v_cvt_pk_bf16_f32", sc, sc, sc)
            a.salu("s_mov_b32 exec_lo, 0xffff")
            a.salu("s_mov_b32 exec_hi, 0xffff")
            a.ds_write("ds_write_b16", vAW, sc, 1, SBLK[j >> 1] + 32 * (j & 1))
            a.salu("s_mov_b64 exec, -1")
            rdB3(B3, j)
        a.mfma(D3[j], A3[0], B3, D3[j])
        a.nop(10)
        a.raw(f"L_sk{kind}{j}:")
    if args.ecv: ocvt((0, 1))
    a.raw("    s_branch L_back")
a.raw("L_codeend:")
acc = (NVGPR + 3) // 4 * 4
a.raw(f""".section .rodata,"a"
.p2align 6
.amdhsa_kernel {NAME}
  .amdhsa_next_free_vgpr {NVGPR}
  .amdhsa_next_free_sgpr {96 if TS else (80 if IW == 2 else 64)}
  .amdhsa_accum_offset {acc}
  .amdhsa_group_segment_fixed_size 0
  .amdhsa_kernarg_size 80
  .amdhsa_user_sgpr_count 2
  .amdhsa_user_sgpr_kernarg_segment_ptr 1
  .amdhsa_system_sgpr_workgroup_id_x 1
.end_amdhsa_kernel""")
sys.stdout.write(a.text())
sys.stderr.write(f"vgpr {NVGPR} lds {LDS}\n")
```

```python
import sys, argparse, copy
from asmlib import Asm
ap = argparse.ArgumentParser()
ap.add_argument("--ts", type=int, default=0)
ap.add_argument("--forceslow", type=int, default=32)
ap.add_argument("--pst", type=int, default=0)
ap.add_argument("--stflags", type=str, default="")
ap.add_argument("--rot", type=int, default=0)
ap.add_argument("--eb", type=int, default=1)
ap.add_argument("--pf", type=int, default=0)
ap.add_argument("--ldl", type=int, default=0)
ap.add_argument("--mf", type=int, default=1)
ap.add_argument("--tx", type=int, default=0)
ap.add_argument("--iw", type=int, default=1)
ap.add_argument("--tlb", type=int, default=0)
ap.add_argument("--cmf", type=int, default=1)
ap.add_argument("--md", type=str, default="")
ap.add_argument("--share", type=int, default=0)
ap.add_argument("--skipv", type=int, default=0)
ap.add_argument("--prio", type=int, default=0)
ap.add_argument("--ecv", type=int, default=0)
ap.add_argument("--paths", type=str, default="L1:7;G4:4;G4:4;G4:4")
args = ap.parse_args()
TS = args.ts
WPW = 4

NAME = "standalone__sequential_behavior_din__recsys_kernel"
NWG = 4096 // WPW
S_HEX = "0xbfb8aa3b"
KSH = 24
SC_F32 = (127 - KSH) << 23
SC_BF = (127 - KSH) << 7
IMG_ACS, IMG_WDS, IMG_AP, IMG_B1, IMG_W2, IMG_B2 = 0, 1024, 2048, 3072, 3136, 3200
WAVE0 = 3264
IW = args.iw
if IW:
    assert not args.tx
    IMG_B2, IMG_SEL, WAVE0 = 3264, 3328, 3456
L_OFF = 6400
SB_OFF = L_OFF + 1024
SBLK = [SB_OFF, SB_OFF + 128]
TF_OFF = SB_OFF + 256
WSZ = TF_OFF + 256
CK = (SB_OFF // 32) & ~3
def b3off(j):
    o = SBLK[j >> 1] - CK * 32
    assert o >= 0 and o % 8 == 0 and o // 8 + 8 < 256
    return o // 8
LDS = WAVE0 + WPW * WSZ
assert WAVE0 % 64 == 0 and WSZ % 64 == 0 and LDS <= 40960

a = Asm()
hdr = open("standalone__sequential_behavior_din__recsys.s.ref").read().split("; Override")[0]
a.raw(hdr.rstrip())
a.raw(f"; @launch grid=({NWG},1,1) block=({64*WPW},1,1) lds={LDS}")
a.raw('.amdgcn_target "amdgcn-amd-amdhsa--gfx950"')
a.raw(".text")
a.raw(f".globl {NAME}")
a.raw(".p2align 8")
a.raw(f".type {NAME},@function")
a.raw(f"{NAME}:")

nv = [1]
def V(n=1, al=None):
    al = al or (2 if n > 1 else 1)
    while nv[0] % al: nv[0] += 1
    r = nv[0]; nv[0] += n
    return r
vL16 = V(); vG8 = V(2); vS = vG8 + 1; vC8 = V(); vE1a = V(); vE3a = V(); vEMa = V()
vB1 = vG8; vA3 = vC8; vEg = vE1a; vH = vE3a
W4 = V(4); A2 = V(2); C2 = V(4); vAW = C2 + 1; vAB3 = C2 + 2; vOut = C2 + 3
Aj = [V(2) for _ in range(4)]
Cj = [V(4) for _ in range(4)]
D3 = [V(4), V(4), None, None]
base_tmp = nv[0]
ACS = V(4); WDS = V(4); AP = V(4); B1S = V(4)
T = [V(4) for _ in range(4)]; TM = [V(4) for _ in range(4)]
maxD1 = nv[0]
nv[0] = base_tmp
B1 = [[V(2), V(2)] for _ in range(2)]
D1 = [[V(4), V(4)] for _ in range(2)]
A3 = [V(4) for _ in range(2)]
B3 = V(4); D2 = V(4)
P = [V(2), V(2)]
tn = [V(2), V(2)]
maxE1 = nv[0]
nv[0] = max(maxD1, maxE1)
base2 = nv[0]
wa = V(4); wb = wa + 1; wc = wa + 2; wd = wa + 3
b1v = V(); w2v = V(); tv = V(); b2v = V()
vM = V(4)
vLane = V(); vL2 = V(); vL2m = V(); vT2 = V(); vN = V(); vG = V(); t0 = V(); t1 = V(); t2 = V(); t3 = V()
vPA = V(); vB16 = V(); vTg = V(); vU = V(); vRow = V(); vZ = V()
maxD2 = nv[0]
nv[0] = base2
GA1 = V(8); GA3 = V(8); EM = V(2); sc = V(); o01 = V(2)
GV = GA3; GX = GA1 if not args.tx else TM[3];
D3[2] = GA1 + 4; D3[3] = GA3 + 4
assert sc % 2 == 0 and o01 == sc + 2
EMP = [GA1, GA1 + 2, EM, sc]
SELA = A2; SELB = C2; B2G = C2 + 2
maxE2 = nv[0]
Q23 = vTg
assert vTg % 2 == 0 and (vU, vRow, vZ) == (vTg + 1, vTg + 2, vTg + 3) and vTg >= maxE2
QQ = [W4, W4 + 2, Q23, Q23 + 2]
NVGPR = max(maxD2, maxE2)
rk = [wa, wb, wc, wd]

stamps = []
def pstamp(idx):
    if args.pst: stamp(idx, True)
def stamp(idx=None, force=False):
    if args.pst and not force and stamps: return
    if TS >= 2:
        r = 68 + 2 * (len(stamps) if idx is None else idx)
        a.salu(f"s_memrealtime s[{r}:{r+1}]")
        if r not in stamps: stamps.append(r)
a.salu(f"s_cmp_ge_u32 s2, {NWG}")
a.salu("s_cbranch_scc1 L_done")
if TS:
    a.salu("s_memrealtime s[60:61]")
    a.salu("s_memtime s[90:91]")
    a.salu("s_load_dwordx2 s[64:65], s[0:1], 72")
a.salu("s_load_dwordx16 s[4:19], s[0:1], 0")
a.salu("s_getreg_b32 s52, hwreg(HW_REG_HW_ID, 0, 4)")
if TS: a.salu("s_mov_b32 s94, s52")
def head1(pi):
    a.valu("v_lshrrev_b32", t0, "6", 0)
    a.valu("v_and_b32", vLane, "63", 0)
    a.ins("rfl", f"v_readfirstlane_b32 s3, v{t0}", rd=[t0], swr=["s3"])
    if args.pf and pi == 0:
        a.salu("s_getpc_b64 s[54:55]")
        a.raw("L_pc:")
        if args.pf >= 2:
            if args.eb == 1: a.salu("s_cmp_lg_u32 s3, 0")
            else: a.salu("s_or_b32 s53, s3, s52")
            a.salu("s_cbranch_scc1 L_npf")
        if args.pf <= 2:
            a.valu("v_lshlrev_b32", t2, "7", vLane)
            a.valu("v_add_u32", vPA, "0x2000", t2)
            a.valu("v_min_u32", t2, "L_codeend-L_pc-4", t2)
            a.valu("v_min_u32", vPA, "L_codeend-L_pc-4", vPA)
            a._emit(f"global_load_dword v{Cj[0]}, v{t2}, s[54:55]")
            a._emit(f"global_load_dword v{Cj[0]+1}, v{vPA}, s[54:55]")
        else:
            nb = args.pf - 2
            a.salu(f"s_getreg_b32 s53, hwreg(HW_REG_HW_ID, 8, {nb})")
            a.salu(f"s_lshl_b32 s53, s53, {14 - nb}")
            a.valu("v_lshl_add_u32", t2, vLane, "7", "s53")
            a.valu("v_min_u32", t2, "L_codeend-L_pc-4", t2)
            if nb == 2: a.salu("s_mov_b32 exec_hi, 0")
            a._emit(f"global_load_dword v{Cj[0]}, v{t2}, s[54:55]")
            if nb == 2: a.salu("s_mov_b32 exec_hi, -1")
        a.raw("L_npf:")
    a.valu("v_add_u32", vT2, 0, 0)
    a.valu("v_add_u32", vL2, vLane, vLane)
    a.valu("v_add_u32", vL2m, vLane, vLane)
    a.valu("v_lshlrev_b32", vL16, "4", vLane)
    a.valu("v_and_b32", vN, "15", vLane)
    a.valu("v_lshrrev_b32", vG, "4", vLane)
    a.valu("v_mov_b32", t3, "0")
    a.valu("v_add_u32", t1, vN, vN)
    a.salu(f"s_mul_i32 s36, s3, {WSZ}")
    a.salu(f"s_add_u32 s36, s36, {WAVE0}")
    a.salu(f"s_mul_i32 s32, s2, {WPW}")
    a.salu("s_add_u32 s32, s32, s3")
    a.salu("s_mul_i32 s33, s32, 6400")
    a.salu("s_mul_i32 s34, s32, 400")
    a.salu("s_lshl_b32 s35, s32, 7")
    a.salu(f"s_add_u32 s41, s36, {L_OFF}")
    a.salu("s_mov_b32 s40, s41")
    a.salu(f"s_mov_b32 s37, {S_HEX}")
    a.salu("s_mov_b32 s22, %d" % (16384 * 1600))
    a.salu("s_mov_b32 s23, 0x20000")
    a.salu("s_mov_b32 s26, %d" % (16384 * 100))
    a.salu("s_mov_b32 s27, 0x20000")
    a.salu("s_mov_b32 s30, %d" % (16384 * 32))
    a.salu("s_mov_b32 s31, 0x20000")
    a.salu("s_mov_b32 s46, %d" % (16384 * 32))
    a.salu("s_mov_b32 s47, 0x20000")
    a.salu("s_mov_b32 m0, s36", swr=["m0"])
    if args.rot:
        a.salu("s_lshr_b32 s42, s2, 3")
        a.salu("s_add_u32 s42, s42, s3")
        a.salu("s_and_b32 s42, s42, 3")
    else:
        a.salu("s_mov_b32 s42, s3")
    a.valu("v_add_u32", vRow, vL16, vL16)
    a.salu("s_mov_b32 exec_lo, 0")
    a.salu("s_mov_b32 exec_hi, 0xfffc0000")
    a.valu("v_mov_b32", vL2m, "0x7ff00000")
    a.valu("v_mov_b32", vRow, str(49 * 32))
    a.salu("s_mov_b64 exec, -1")
    a._emit("s_waitcnt lgkmcnt(0)")
    stamp(0, True)


if args.eb != 1: head1(0)
K = ["L"]
issued = [0]
def dma(k):
    if K[0] == "L":
        if k == 4: a.salu("s_add_u32 m0, s36, 4096", swr=["m0"])
        if k == 6: a.salu("s_mov_b64 exec, 0xffff")
        so = "s33" if k < 4 else "s38"
        off = (k % 4) * 1024
        a.ins("dma", f"buffer_load_dwordx4 v{vL16}, s[20:23], {so} offen" + (f" offset:{off}" if off else "") + " lds", rd=[vL16], tag=f"h{k}")
        if k == 6: a.salu("s_mov_b64 exec, -1")
    else:
        if k == 2: a.salu("s_add_u32 m0, s36, 3200", swr=["m0"])
        so = "s33" if k < 2 else "s38"
        off = (k % 2) * 1600
        a.ins("dma", f"buffer_load_dwordx4 v{GV+k}, s[20:23], {so} offen" + (f" offset:{off}" if off else "") + " lds", rd=[GV + k], tag=f"h{k}")
guard = [False, 0]
def dma_upto(n):
    todo = issued[0] < min(n, 7 if K[0] == "L" else 4)
    if todo and guard[0]:
        a.salu("s_cmp_lg_u32 s53, 0")
        a.salu(f"s_cbranch_scc1 L_gd{guard[1]}")
    while issued[0] < min(n, 7 if K[0] == "L" else 4):
        dma(issued[0]); issued[0] += 1
    if todo and guard[0]:
        a.raw(f"L_gd{guard[1]}:"); guard[1] += 1
def add64(r, off, sh=0):
    a.ins("valu", f"v_lshl_add_u64 v[{r}:{r+1}], v[{r}:{r+1}], {sh}, {off}", rd=[r, r + 1], wr=[r, r + 1])
def gadd(q, off):
    a.ins("valu", f"v_add_u32_sdwa v{q}, v{q}, v{off} dst_sel:DWORD dst_unused:UNUSED_PAD src0_sel:WORD_0 src1_sel:DWORD", rd=[q, off], wr=[q])
def pk(op, dst, srcs, mod=""):
    rd = [r + k for r in srcs if isinstance(r, int) for k in range(2)]
    a.ins("valu", f"{op} v[{dst}:{dst+1}], " + ", ".join(f"v[{r}:{r+1}]" if isinstance(r, int) else r for r in srcs) + (" " + mod if mod else ""), rd=rd, wr=[dst, dst + 1])

def prologue(cfg, pi, part='AB'):
    G = K[0] == "G"
    early = (lambda p: None) if G else (lambda p: dma_upto(cfg.get(p, 0)))
    def tlb_touch():
        a.salu("s_cmp_lg_u32 s3, 3")
        a.salu("s_cbranch_scc1 L_ntl")
        a.salu(f"s_cmp_lt_u32 s52, {3 if args.tlb != 3 else 2}")
        a.salu("s_cbranch_scc1 L_ntl")
        step = (2 << 20) if args.tlb != 2 else (1 << 20)
        for off in list(range(6 << 20, 16384 * 1600, step)) + [16384 * 1600 - 4]:
            a.salu(f"s_mov_b32 s81, {off}")
            a.salu("s_load_dword s80, s[6:7], s81")
        a.salu("s_load_dword s80, s[18:19], 0")
        a.raw("L_ntl:")
    if part == 'B': a.salu(f"s_add_u32 s38, s33, {3200 if G else 4096}")
    if 'A' in part:
        if IW == 2:
            assert TS < 2
            a.salu("s_load_dwordx8 s[72:79], s[14:15], 0")
        if args.tlb == 4 and pi == 2: tlb_touch()
        a.salu("s_mov_b32 s20, s6")
        a.salu("s_and_b32 s21, s7, 0xffff")
        if part == 'AB':
            a.salu(f"s_add_u32 s38, s33, {3200 if G else 4096}")
            early(-1)
        a.salu("s_cmp_lg_u32 s42, 0")
        a.salu(f"s_cbranch_scc1 L_nb{pi}")
        a.ins("vmem", f"global_load_short_d16_hi v{b2v}, v{t3}, s[16:17]", rd=[t3], wr=[b2v])
        a.ins("vmem", f"global_load_short_d16_hi v{b1v}, v{t1}, s[12:13]", rd=[t1], wr=[b1v])
        a.ins("vmem", f"global_load_short_d16_hi v{w2v}, v{t1}, s[14:15]", rd=[t1], wr=[w2v])
        a.raw(f"L_nb{pi}:")
    def ld_w():
        for i, r in enumerate((wa, wb, wc, wd)):
            a.ins("vmem", f"global_load_short_d16_hi v{r}, v{vT2}, s[10:11]" + (f" offset:{512*i}" if i else ""), rd=[vT2], wr=[r])
        a.salu("s_mov_b32 s44, s4")
        a.salu("s_and_b32 s45, s5, 0xffff")
        a.ins("vmem", f"buffer_load_short_d16_hi v{tv}, v{vL2}, s[44:47], s35 offen", rd=[vL2], wr=[tv])
    def ld_m():
        a.salu("s_mov_b32 s24, s8")
        a.salu("s_and_b32 s25, s9, 0xffff")
        if MD:
            assert issued[0] < 4
            a.salu("s_mov_b32 m0, s41", swr=["m0"])
            a.salu("s_mov_b32 exec_lo, 0x1ffffff")
            a.salu("s_mov_b32 exec_hi, 0")
            a.ins("dma", f"buffer_load_dwordx4 v{vL16}, s[24:27], s34 offen lds", rd=[vL16], tag="mk")
            a.salu("s_mov_b64 exec, -1")
            a.salu("s_mov_b32 m0, s36", swr=["m0"])
            for j in range(4): a.valu("v_mov_b32", vM + j, "0")
            return
        for j in range(4):
            a.ins("vmem", f"buffer_load_short_d16_hi v{vM+j}, v{vL2m}, s[24:27], s34 offen" + (f" offset:{100*j}" if j else ""), rd=[vL2m], wr=[vM + j])
    def rd_m():
        if not MD: return
        a.wait_vm_for(tag="mk")
        a.salu("s_mov_b32 exec_hi, 0x3ffff")
        for j in range(4): a.ds_read("ds_read_u16_d16_hi", vM + j, 1, vAW, L_OFF + 100 * j)
        a.salu("s_mov_b32 exec_hi, -1")
    MD = str(pi) in args.md if part == 'AB' else bool(args.md)
    mf = G and args.mf
    ec = mf and cfg.get(2, 0) > 0
    if part == 'A':
        if args.cmf: ld_m(); ld_w()
        else: ld_w(); ld_m()
        return
    if part == 'B': pass
    elif mf: ld_m(); ld_w()
    else: ld_w(); ld_m()
    pstamp(1)
    early(0)
    if args.tlb in (1, 2, 3) and pi == 2: tlb_touch()
    a.salu("s_mov_b32 s28, s18")
    a.salu("s_and_b32 s29, s19, 0xffff")
    a.salu("s_mov_b32 s39, 0xffff")
    a.salu("s_lshl_b32 s49, s3, 8")
    a.salu(f"s_mov_b32 s56, {SC_BF:#x}")
    a.salu("s_mov_b32 s57, 0")
    a.valu("v_sub_u32", vZ, "63", vLane)
    a.valu("v_lshlrev_b32", t0, "3", vG)
    a.valu("v_lshl_add_u32", vOut, vN, "5", t0)
    a.valu("v_add_u32", vB16, t0, t0)
    a.valu("v_add_u32", vTg, "s36", vB16)
    if not IW: a.valu("v_mov_b32", vS, f"{SC_F32:#x}")
    TX = G and args.tx
    if TX:
        a.valu("v_lshl_add_u32", vU, vLane, "2", "s36")
        a.valu("v_lshlrev_b32", SELA, vL16, "s56")
        a.valu("v_mov_b32", SELA + 1, "0")
        a.valu("v_mov_b32", SELB, "0")
        a.valu("v_mov_b32", SELB + 1, SELA)
    else:
        a.valu("v_add_u32", vAW, "s36", vL2)
        a.valu("v_add_u32", vU, vAW, vL2)
        if not IW: a.ins("valu", f"v_lshlrev_b64 v[{A2}:{A2+1}], v{vU}, s[56:57]", rd=[vU], wr=[A2, A2 + 1])
        a.salu(f"s_add_u32 s50, s36, {CK*32}")
        a.valu("v_and_b32", t3, "0x38", vOut)
        a.valu("v_add_u32", vAB3, "s50", t3)
    if not G:
        a.valu("v_add_u32", vG8, "s36", t0)
        a.valu("v_and_b32", t3, "3", vLane)
        a.valu("v_lshl_add_u32", vC8, t3, "3", "s36")
        a.valu("v_lshl_add_u32", vE1a, vN, "3", "s41")
        a.valu("v_and_b32", t3, "0x78", vL2)
        a.valu("v_add_u32", vE3a, "s41", t3)
        a.valu("v_lshrrev_b32", t3, "5", vLane)
        a.valu("v_lshl_add_u32", vEMa, t3, "2", vE1a)
        a.valu("v_and_b32", t3, "16", vLane)
        a.valu("v_lshl_add_u32", vEMa, t3, "4", vEMa)
    else:
        a.valu("v_and_b32", t3, "16", vL2)
        a.valu("v_xad_u32", vB1, vOut, t3, "s36")
        a.valu("v_lshrrev_b32", t3, "1", vLane)
        a.valu("v_lshl_add_u32", vEg, t3, "2", "s41")
        a.valu("v_and_b32", t3, "16", t3)
        a.valu("v_lshrrev_b32", t0, "1", vL16)
        a.valu("v_xad_u32", vA3, t0, t3, "s36")
        a.valu("v_xor_b32", vH, vL16, vLane)
        a.valu("v_and_b32", vH, "16", vH)
        if TX:
            a.valu("v_lshl_add_u32", vEMa, vN, "2", "s41")
        else:
            a.valu("v_lshl_add_u32", vEMa, t3, "2", "s41")
            a.valu("v_lshl_add_u32", vEMa, vN, "2", vEMa)
            a.valu("v_and_b32", t3, "16", vLane)
            a.valu("v_lshl_add_u32", vEMa, t3, "4", vEMa)
    rk = [T[0], T[0] + 1, T[0] + 2, T[0] + 3] if ec else [wa, wb, wc, wd]
    def compaction():
        for j in range(4):
            a.ins("valu", f"v_cmp_lt_u32 s[{48+2*j}:{49+2*j}], s39, v{vM+j}", rd=[vM + j], swr=[f"s{48+2*j}", f"s{49+2*j}"])
        for j in range(4): a.valu("v_or_b32", vM + j, vRow, vM + j)
        for j in range(4): a.valu("v_cndmask_b32", rk[j], vZ, "0", f"s[{48+2*j}:{49+2*j}]")
        for j in range(4): a.valu("v_mbcnt_lo_u32_b32", rk[j], f"s{48+2*j}", rk[j])
        for j in range(4): a.valu("v_mbcnt_hi_u32_b32", rk[j], f"s{49+2*j}", rk[j])
        for j in (0, 2): add64(rk[j], "s[40:41]", 2)
        for j in range(4): a.ds_write("ds_write_b32", rk[j], vM + j, 1, 256 * j)
        for j in range(4):
            a.salu(f"s_bcnt1_i32_b64 s{56+j}, s[{48+2*j}:{49+2*j}]")
        a.salu("s_max_u32 s43, s56, s57")
        a.salu("s_max_u32 s48, s58, s59")
        a.salu("s_max_u32 s43, s43, s48")
    def gv_read():
        for j in (0, 2):
            a.ins("ds", f"ds_read2st64_b32 v[{GV+j}:{GV+j+1}], v{vEg} offset0:{j} offset1:{j+1}", rd=[vEg], wr=[GV + j, GV + j + 1])
    def gv_issue(n):
        for j in range(4): gadd(GV + j, vH)
        dma_upto(n)
    a.valu("v_lshl_add_u32", t3, vN, "4", "s49")
    a.valu("v_lshl_add_u32", vPA, vG, "2", t3)
    if IW == 2:
        a.valu("v_lshlrev_b32", t2, "2", vN)
        a.valu("v_and_b32", t0, "2", vN)
        a.valu("v_lshlrev_b32", t0, "5", t0)
        a.valu("v_and_b32", t3, "12", vN)
        a.valu("v_lshl_add_u32", t0, t3, "2", t0)
        a.valu("v_and_b32", t3, "1", vN)
        a.valu("v_lshl_add_u32", t0, t3, "3", t0)
        a._emit("s_waitcnt lgkmcnt(0)")
        for i in range(8): a.salu(f"s_and_b32 s{4+i}, s{72+i}, 0x7f807f80")
        for i in range(8): a.salu(f"s_lshl_b32 s{12+i}, s{4+i}, 16")
        for st in (8, 4, 2, 1):
            for i in range(st): a.salu(f"s_max_u32 s{4+i}, s{4+i}, s{4+st+i}")
        a.salu("s_and_b32 s4, s4, 0x7f800000")
        a.salu(f"s_max_u32 s4, s4, {(KSH + 1) << 23:#x}")
        a.salu(f"s_min_u32 s4, s4, {253 << 23:#x}")
        a.salu(f"s_sub_u32 s5, {254 << 23:#x}, s4")
        a.salu("s_lshr_b32 s56, s4, 16")
        a.salu(f"s_sub_u32 s56, s56, {KSH << 7:#x}")
        a.salu("s_mov_b32 s6, 0x7fffffff")
        a.salu(f"s_mov_b32 s7, {(127 - 28) << 23:#x}")
        a.salu("s_mov_b32 s8, 0xc1c00000")
        a.ins("valu", f"v_lshlrev_b64 v[{A2}:{A2+1}], v{vU}, s[56:57]", rd=[vU], wr=[A2, A2 + 1])
    if not G and args.ldl:
        for _ in range(args.ldl): a.salu("s_nop 15")
    if cfg.get(99): a.salu(f"s_sleep {cfg[99]}")
    early(1)
    pstamp(2)
    if ec:
        rd_m()
        compaction(); gv_read()
        pstamp(3)
        gv_issue(cfg[2])
    a.valu("v_add_f32", wa, wa, wc)
    if not ec: pstamp(3)
    a.valu("v_sub_f32", wb, wb, wc)
    a.valu("v_mul_f32", wa, "s37", wa)
    a.valu("v_mul_f32", wb, "s37", wb)
    a.valu("v_mul_f32", wd, "s37", wd)
    a.ds_write("ds_write_b32", vPA, wa, 1, IMG_ACS)
    a.valu("v_cvt_pk_bf16_f32", t1, wb, wb)
    a.ds_write("ds_write_b32", vPA, wd, 1, IMG_WDS)
    a.ds_write("ds_write_b32", vPA, t1, 1, IMG_AP)
    a.salu("s_cmp_lg_u32 s42, 0")
    a.salu(f"s_cbranch_scc1 L_np{pi}")
    if IW == 2:
        qs, q0 = TM[0], TM[1]
        a.valu("v_mul_f32", w2v, "s5", w2v)
        a.valu("v_mul_f32", b1v, "s37", b1v)
        a.ins("valu", f"v_max_f32_e64 v{qs}, |v{w2v}|, s7", rd=[w2v], wr=[qs])
        a.valu("v_bfi_b32", qs, "s6", qs, w2v)
        a.valu("v_rcp_f32", q0, qs, kind="trans")
        a.valu("v_add_f32", b1v, "s8", b1v)
        a.valu("v_mul_f32", q0 + 1, f"{SC_F32:#x}", q0)
    else:
        a.valu("v_mov_b32", t0, "0xc1c00000")
        a.valu("v_lshlrev_b32", t2, "2", vN)
        a.valu("v_fma_f32", b1v, b1v, "s37", t0)
    if IW == 1:
        qe, qs, q0, q1 = TM[0], TM[0] + 1, TM[1], TM[1] + 2
        a.valu("v_and_b32", qe, "0x7f800000", w2v)
        for rr in (8, 4, 2, 1):
            a.nop(2)
            a.ins("valu", f"v_max_u32_dpp v{qe}, v{qe}, v{qe} row_ror:{rr} row_mask:0xf bank_mask:0xf", rd=[qe], wr=[qe])
        a.valu("v_max_u32", qe, f"{(KSH + 1) << 23:#x}", qe)
        a.valu("v_min_u32", qe, f"{253 << 23:#x}", qe)
        a.valu("v_sub_u32", qs, f"{254 << 23:#x}", qe)
        a.valu("v_mul_f32", w2v, w2v, qs)
        a.valu("v_mov_b32", t0, f"{(127 - 28) << 23:#x}")
        a.ins("valu", f"v_max_f32_e64 v{qs}, |v{w2v}|, v{t0}", rd=[w2v, t0], wr=[qs])
        a.salu("s_mov_b32 s51, 0x7fffffff" if not ec else "s_mov_b32 s49, 0x7fffffff")
        a.valu("v_bfi_b32", qs, "s51" if not ec else "s49", qs, w2v)
        a.valu("v_rcp_f32", q0, qs, kind="trans")
        a.valu("v_lshrrev_b32", q1, "16", qe)
        a.valu("v_mul_f32", q0 + 1, f"{SC_F32:#x}", q0)
        a.valu("v_subrev_u32", q1, f"{KSH << 7:#x}", q1)
        a.valu("v_mov_b32", q1 + 1, "0")
        a.valu("v_and_b32", t0, "2", vN)
        a.valu("v_lshlrev_b32", t0, "5", t0)
        a.valu("v_and_b32", t3, "12", vN)
        a.valu("v_lshl_add_u32", t0, t3, "2", t0)
        a.valu("v_and_b32", t3, "1", vN)
        a.valu("v_lshl_add_u32", t0, t3, "3", t0)
        a.valu("v_add_u32", t3, t2, t2)
    a.salu("s_mov_b64 exec, 0xffff")
    a.ds_write("ds_write_b32", t2, b1v, 1, IMG_B1)
    if IW:
        a.ds_write("ds_write_b64", t0, q0, 2, IMG_W2)
        if IW == 1: a.ds_write("ds_write_b64", t3, q1, 2, IMG_SEL)
    else:
        a.ds_write("ds_write_b32", t2, w2v, 1, IMG_W2)
    a.ds_write("ds_write_b32", t2, b2v, 1, IMG_B2)
    a.salu("s_mov_b64 exec, -1")
    a.raw(f"L_np{pi}:")
    early(2)
    a.ds_write("ds_write_b32", vU, tv, 1, TF_OFF)
    pre = G and cfg.get(2, 0) > 0
    if not ec: rd_m()
    if pre and not ec:
        compaction(); gv_read(); gv_issue(cfg[2])
    a.wait_lds_all()
    stamp(1)
    pstamp(4)
    a._emit("s_barrier")
    pstamp(5)
    for j in range(2):
        a.ds_read("ds_read_b128", T[j], 4, vTg, TF_OFF + 64 * j)
    a.ds_read("ds_read_b128", ACS, 4, vL16, IMG_ACS)
    a.ds_read("ds_read_b128", WDS, 4, vL16, IMG_WDS)
    for j in range(2, 4):
        a.ds_read("ds_read_b128", T[j], 4, vTg, TF_OFF + 64 * j)
    a.ds_read("ds_read_b128", AP, 4, vL16, IMG_AP)
    a.ds_read("ds_read_b128", B1S, 4, vB16, IMG_B1)
    a.ds_read("ds_read_b128", W4, 4, vB16, IMG_W2)
    a.ds_read("ds_read_b32", B2G if TX else C2, 1, vB16, IMG_B2)
    if IW == 1: a.ds_read("ds_read_b64", A2, 2, vB16, IMG_SEL)
    early(3)
    if not pre:
        compaction()
        early(4)
        if G: gv_read()
    if not G:
        for j in range(4):
            a.ds_read("ds_read_b64", GA1 + 2 * j, 2, vE1a, 256 * j)
    for j in range(4):
        for k in (0, 2): pk("v_pk_fma_f32", TM[j] + k, [T[j] + k, WDS + k, ACS + k])
    if G and not pre: gv_issue(cfg.get(4, 0))
    if pre: dma_upto(cfg.get(4, 0))
    if not G:
        for j in range(4):
            a.ds_read("ds_read_b64", GA3 + 2 * j, 2, vE3a, 256 * j)
    if TX:
        for j in range(4):
            for i in range(2): a.ds_read("ds_read_u16_d16_hi", EMP[j] + i, 1, vEMa, 256 * j + 64 * i + 2)
        a.valu("v_mul_f32", B2G, f"{(127 + KSH - 2) << 23:#x}", B2G)
    else:
        for h in range(2):
            a.ds_read("ds_read_u16_d16_hi", EM + h, 1, vEMa, 512 * h + 2)
    if IW:
        if IW == 1: a.ins("valu", f"v_lshlrev_b64 v[{A2}:{A2+1}], v{vU}, v[{A2}:{A2+1}]", rd=[vU, A2, A2 + 1], wr=[A2, A2 + 1])
        a.ds_read("ds_read_b128", Q23, 4, vB16, IMG_W2 + 64)
    for j in range(4):
        a.mfma(Cj[j], AP, T[j], B1S)
    for j in range(4):
        a.valu("v_cvt_pk_bf16_f32", Aj[j], TM[j], TM[j] + 1)
        a.valu("v_cvt_pk_bf16_f32", Aj[j] + 1, TM[j] + 2, TM[j] + 3)
    if not G:
        for t in range(8): gadd(GA1 + t, vG8)
    dma_upto(max(cfg.get(5, 0), 1 if G else 2))

def parse(c): return {int(x.split(":")[0]): int(x.split(":")[1]) for x in c.split(",") if x}
def need(j): return {0: 1, 1: 3, 2: 4, 3: 6}[j] if K[0] == "L" else j
def L(j):
    dma_upto(need(j) + 1)
    a.wait_vm_for(tag=f"h{need(j)}")
    for i in range(2):
        if K[0] == "L": a.ds_read("ds_read_b64", B1[j % 2][i], 2, GA1 + 2 * j + i, 1600 * j)
        else: a.ds_read("ds_read_b64", B1[j % 2][i], 2, vB1, 1600 * j + 512 * i)
def M(j):
    for i in range(2):
        a.mfma16(D1[j % 2][i], Aj[j], B1[j % 2][i], Cj[j])
def S(dd, dst, second, mid=None, em=None):
    A_, B_ = dd
    u = tn[0]; assert tn[1] == u + 2
    Pp = [u, u + 2, A_, B_]
    for (h, r) in ((0, 0), (0, 1), (0, 2), (1, 0), (1, 1), (0, 3), (1, 2), (1, 3))[:4 if args.skipv & 2 else 8]:
        a.ins("trans", f"v_exp_f32_e64 v{Pp[r]+h}, v{dd[h]+r} clamp", rd=[dd[h] + r], wr=[Pp[r] + h])
    if mid: mid()
    n01, n23 = A_ + 2, B_ + 2
    if IW:
        for r in range(4): pk("v_pk_fma_f32", Pp[r], [Pp[r], QQ[r], QQ[r]], "op_sel:[0,0,1] op_sel_hi:[1,0,1]")
        pk("v_pk_mul_f32", n23, [Pp[0], Pp[1]])
        pk("v_pk_add_f32", n01, [Pp[0], Pp[1]])
        pk("v_pk_mul_f32", Pp[0], [n23, Pp[2]])
        pk("v_pk_fma_f32", n01, [n01, Pp[2], n23])
        pk("v_pk_mul_f32", Pp[1], [Pp[0], Pp[3]])
        for i in range(2): a.valu("v_rcp_f32", Pp[1] + i, Pp[1] + i, kind="trans")
        pk("v_pk_fma_f32", n01, [n01, Pp[3], Pp[0]])
    else:
        if not args.skipv & 1:
            for r in range(4): pk("v_pk_add_f32", Pp[r], [Pp[r], vG8], "op_sel:[0,1] op_sel_hi:[1,1]")
        pk("v_pk_mul_f32", n01, [W4, Pp[1]], "op_sel:[0,0] op_sel_hi:[0,1]")
        pk("v_pk_mul_f32", n23, [W4 + 2, Pp[3]], "op_sel:[0,0] op_sel_hi:[0,1]")
        pk("v_pk_fma_f32", n01, [W4, Pp[0], n01], "op_sel:[1,0,0] op_sel_hi:[1,1,1]")
        pk("v_pk_fma_f32", n23, [W4 + 2, Pp[2], n23], "op_sel:[1,0,0] op_sel_hi:[1,1,1]")
        pk("v_pk_mul_f32", Pp[0], [Pp[0], Pp[1]])
        pk("v_pk_mul_f32", Pp[2], [Pp[2], Pp[3]])
        pk("v_pk_mul_f32", Pp[1], [Pp[0], Pp[2]])
        pk("v_pk_mul_f32", n01, [n01, Pp[2]])
        for i in range(2): a.valu("v_rcp_f32", Pp[1] + i, Pp[1] + i, kind="trans")
        pk("v_pk_fma_f32", n01, [n23, Pp[0], n01])
    last = Pp[1]
    if em is not None:
        pk("v_pk_fma_f32", n01, [n01, Pp[1], B2G], "op_sel:[0,0,0] op_sel_hi:[1,1,0]")
        last = em
    if second == 0:
        pk("v_pk_mul_f32", dst, [n01, last])
    else:
        pk("v_pk_mul_f32", n01, [n01, last])
        for i in range(2):
            a.valu("v_cvt_pk_bf16_f32", dst + i, (dst if second == 1 else n01) + i, n01 + i)
def Sj(j, mid=None):
    S(D1[j % 2], P[j // 2], j % 2, mid, EMP[j] if istx() else None)
def istx(): return K[0] == "G" and args.tx
def W(h):
    if istx():
        a.mfma16(B3, P[h], SELB, "0")
        a.mfma16(D2, P[h], SELA, "0")
    else:
        a.mfma16(D2, A2, P[h], C2)
def Xt():
    a.valu("v_cvt_pk_bf16_f32", B3 + 3, B3 + 2, B3 + 3)
    a.valu("v_cvt_pk_bf16_f32", B3 + 2, B3, B3 + 1)
    a.valu("v_cvt_pk_bf16_f32", B3, D2, D2 + 1)
    a.valu("v_cvt_pk_bf16_f32", B3 + 1, D2 + 2, D2 + 3)
def ocvt(js):
    for j in js:
        m = (1 << j) | (1 << (j + 16))
        a.salu(f"s_mov_b32 exec_lo, {m:#x}")
        a.salu(f"s_mov_b32 exec_hi, {m:#x}")
        a.valu("v_cvt_pk_bf16_f32", o01, D3[j], D3[j] + 1)
        a.valu("v_cvt_pk_bf16_f32", o01 + 1, D3[j] + 2, D3[j] + 3)
def T3(h):
    for i in range(2):
        j = 2 * h + i
        for u in range(2):
            if K[0] == "L": a.ds_read("ds_read_b64_tr_b16", A3[i] + 2 * u, 2, GA3 + 2 * j + u, 1600 * j)
            else: a.ds_read("ds_read_b64_tr_b16", A3[i] + 2 * u, 2, vA3, 1600 * j + 512 * u)
def rdB3(dst, j):
    o = b3off(j)
    a.ins("ds", f"ds_read2_b64 v[{dst}:{dst+3}], v{vAB3} offset0:{o} offset1:{o+8}", rd=[vAB3], wr=range(dst, dst + 4))
def X(h):
    if istx(): return Xt()
    a.valu("v_mul_f32", sc, D2, EM + h)
    a.valu("v_cvt_pk_bf16_f32", sc, sc, sc)
    a.ds_write("ds_write_b16", vAW, sc, 1, SBLK[h])
    rdB3(B3, 2 * h)
def Y(h):
    for i in range(2): a.mfma(D3[2 * h + i], A3[i], B3, "0")

def main1(CM, pi):
    G = K[0] == "G"
    if G:
        a.salu(f"s_cmp_gt_u32 s43, {args.forceslow}")
        a.salu(f"s_cbranch_scc1 L_xd{pi}")
        a.raw(f"L_xb{pi}:")
        a.m0_write = a.pos
        if args.share and pi == 1:
            assert issued[0] == 4
            a.salu("s_mov_b32 s53, 1")
            a.wait_lds_all()
            a.salu("s_branch L_shared")
            return
        if args.share and pi == 2:
            a.salu("s_mov_b32 s53, 0")
            a.raw("L_shared:")
            guard[0] = True
    stamp(2)
    L(0)
    dma_upto(CM.get(6, 0))
    if not G:
        for t in range(8): gadd(GA3 + t, vC8)
    M(0)
    dma_upto(CM.get(7, 0))
    Sj(0, mid=lambda: (L(1), dma_upto(CM.get(8, 0))))
    M(1)
    dma_upto(CM.get(9, 0))
    stamp(3)
    Sj(1, mid=lambda: (L(2), T3(0), dma_upto(CM.get(10, 0))))
    M(2)
    W(0)
    dma_upto(7)
    if args.prio == 2 and G: a.salu("s_setprio 0")
    stamp(4)
    Sj(2, mid=lambda: X(0))
    Y(0)
    L(3)
    T3(1)
    M(3)
    if args.ecv:
        ocvt((0, 1))
        a.salu("s_mov_b64 exec, -1")
    stamp(5)
    Sj(3)
    W(1)
    X(1)
    Y(1)
    assert not a.lds_q and not a.vm_q
    a.salu(f"s_cmp_gt_u32 s43, {args.forceslow}")
    a.salu(f"s_cbranch_scc1 L_slow{K[0]}")

paths = args.paths.split(";")
assert len(paths) == 4
groups = []
for sl, c in enumerate(paths):
    if not groups or groups[-1][1] != c: groups.append((sl, c))
if args.eb == 2: prologue({}, 0, 'A')
for gi in range(len(groups) - 1, 0, -1):
    a.salu(f"s_cmp_ge_u32 s52, {groups[gi][0]}")
    a.salu(f"s_cbranch_scc1 L_path{gi}")
snap = copy.deepcopy({k: v for k, v in a.__dict__.items() if k != "lines"})
xd = []
for gi, (sl, c) in enumerate(groups):
    if gi: a.raw(f"L_path{gi}:")
    a.__dict__.update(copy.deepcopy(snap)); issued[0] = 0
    K[0] = c[0]; cfg = parse(c[1:])
    if args.prio and K[0] == "G": a.salu("s_setprio 3")
    if args.prio == 4 and K[0] == "L": a.salu("s_setprio 3")
    if args.eb == 1: head1(gi)
    prologue(cfg, gi, 'B' if args.eb == 2 else 'AB')
    if args.prio in (1, 4): a.salu("s_setprio 0")
    if args.prio == 3 and K[0] == "G": a.salu(f"s_setprio {gi}")
    if K[0] == "G": xd.append((gi, issued[0]))
    main1(cfg, gi)
    sys.stderr.write(f"path {c}: nops {a.nops} stat {a.stat}\n")
    guard[0] = False
    if gi < len(groups) - 1 and not (args.share and gi == 1): a.salu("s_branch L_back")
a.raw("L_back:")
a.nop(2)
if args.ecv: a.nop(2)
ocvt((2, 3) if args.ecv else (0, 1, 2, 3))
a.salu("s_mov_b32 exec_lo, 0x000f000f")
a.salu("s_mov_b32 exec_hi, 0x000f000f")
a.ins("vmemst", f"buffer_store_dwordx2 v[{o01}:{o01+1}], v{vOut}, s[28:31], s35 offen {args.stflags}", rd=[o01, o01 + 1, vOut])
if TS:
    a.raw("""    s_waitcnt vmcnt(0)
    s_memrealtime s[62:63]
    s_memtime s[92:93]
    s_lshl_b32 s66, s32, 4
    v_mov_b32 v1, s66
    s_waitcnt lgkmcnt(0)
    v_mov_b32 v4, s60
    s_sub_u32 s92, s92, s90
    v_mov_b32 v5, s92
    v_mov_b32 v6, s62
    s_lshl_b32 s95, s43, 8
    s_or_b32 s94, s94, s95
    s_getreg_b32 s95, hwreg(HW_REG_HW_ID, 8, 8)
    s_lshl_b32 s95, s95, 16
    s_or_b32 s94, s94, s95
    v_mov_b32 v7, s94
    s_mov_b64 exec, 1
    global_store_dwordx4 v1, v[4:7], s[64:65]""")
    if TS >= 2:
        a.raw("    s_lshl_b32 s66, s32, 5\n    s_add_u32 s66, s66, 0x100000\n    v_mov_b32 v1, s66")
        st = [60] + stamps + [62]
        assert len(st) == 8
        for i, r in enumerate(st):
            a.raw(f"    v_mov_b32 v{8+i}, s{r}")
        a.raw("    global_store_dwordx4 v1, v[8:11], s[64:65]\n    global_store_dwordx4 v1, v[12:15], s[64:65] offset:16")
a.raw("L_done:")
a.raw("    s_endpgm")
for gi, nis in xd:
    a.raw(f"L_xd{gi}:")
    a.lds_q = []; a.vm_q = []
    a._emit("s_waitcnt lgkmcnt(0)")
    for j in range(4):
        a.salu(f"s_cmp_le_u32 s{56+j}, {args.forceslow}")
        a.salu(f"s_cbranch_scc1 L_xs{gi}_{j}")
        a.ds_read("ds_read_b32", GX + j, 1, vEg, 256 * j + 128)
        a.salu(f"s_add_u32 m0, s36, {1600*j+1024}", swr=["m0"])
        a.salu(f"s_add_u32 s48, s33, {1600*j}")
        gadd(GX + j, vH)
        a.salu("s_mov_b32 exec_hi, 15")
        a.ins("dma", f"buffer_load_dwordx4 v{GX+j}, s[20:23], s48 offen lds", rd=[GX + j], tag="x")
        a.salu("s_mov_b32 exec_hi, -1")
        a.raw(f"L_xs{gi}_{j}:")
    a.salu(f"s_add_u32 m0, s36, {3200 if nis > 2 else 0}", swr=["m0"])
    a.raw(f"    s_branch L_xb{gi}")
for kind in sorted(set(c[0] for sl, c in groups)):
    K[0] = kind; G = kind == "G"
    a.raw(f"L_slow{kind}:")
    a.lds_q = []; a.vm_q = []
    a.nop(4)
    for j in range(4):
        a.salu(f"s_cmp_le_u32 s{56+j}, {args.forceslow}")
        a.salu(f"s_cbranch_scc1 L_sk{kind}{j}")
        if not G:
            a.ds_read("ds_read_b64", GA1, 2, vE1a, 256 * j + 128)
            a.ds_read("ds_read_b64", GA3, 2, vE3a, 256 * j + 128)
        if istx():
            for i in range(2): a.ds_read("ds_read_u16_d16_hi", EM + i, 1, vEMa, 256 * j + 2 + 128 + 64 * i)
        else:
            a.ds_read("ds_read_u16_d16_hi", EM, 1, vEMa, 256 * j + 2 + 128)
        if not G:
            for t in range(2): gadd(GA1 + t, vG8)
        for i in range(2):
            if G: a.ds_read("ds_read_b64", B1[0][i], 2, vB1, 1600 * j + 1024 + 512 * i)
            else: a.ds_read("ds_read_b64", B1[0][i], 2, GA1 + i, 1600 * j)
        if not G:
            for t in range(2): gadd(GA3 + t, vC8)
        for u in range(2):
            if G: a.ds_read("ds_read_b64_tr_b16", A3[0] + 2 * u, 2, vA3, 1600 * j + 1024 + 512 * u)
            else: a.ds_read("ds_read_b64_tr_b16", A3[0] + 2 * u, 2, GA3 + u, 1600 * j)
        for i in range(2):
            a.mfma16(D1[0][i], Aj[j], B1[0][i], Cj[j])
        if istx():
            S(D1[0], P[0], 2, None, EM)
            W(0); Xt()
        else:
            S(D1[0], P[0], 2)
            a.mfma16(D2, A2, P[0], C2)
            a.valu("v_mul_f32", sc, D2, EM)
            a.valu("v_cvt_pk_bf16_f32", sc, sc, sc)
            a.salu("s_mov_b32 exec_lo, 0xffff")
            a.salu("s_mov_b32 exec_hi, 0xffff")
            a.ds_write("ds_write_b16", vAW, sc, 1, SBLK[j >> 1] + 32 * (j & 1))
            a.salu("s_mov_b64 exec, -1")
            rdB3(B3, j)
        a.mfma(D3[j], A3[0], B3, D3[j])
        a.nop(10)
        a.raw(f"L_sk{kind}{j}:")
    if args.ecv: ocvt((0, 1))
    a.raw("    s_branch L_back")
a.raw("L_codeend:")
acc = (NVGPR + 3) // 4 * 4
a.raw(f""".section .rodata,"a"
.p2align 6
.amdhsa_kernel {NAME}
  .amdhsa_next_free_vgpr {NVGPR}
  .amdhsa_next_free_sgpr {96 if TS else (88 if IW == 2 else 64)}
  .amdhsa_accum_offset {acc}
  .amdhsa_group_segment_fixed_size 0
  .amdhsa_kernarg_size 80
  .amdhsa_user_sgpr_count 2
  .amdhsa_user_sgpr_kernarg_segment_ptr 1
  .amdhsa_system_sgpr_workgroup_id_x 1
.end_amdhsa_kernel""")
sys.stdout.write(a.text())
sys.stderr.write(f"vgpr {NVGPR} lds {LDS}\n")
```
